```python
import torch

def _softmax(x, axis=-1):
    return torch.softmax(x, dim=axis)

def _gelu(x):
    return torch.nn.functional.gelu(x, approximate='tanh')

def _silu(x):
    return torch.nn.functional.silu(x)

def _sigmoid(x):
    return torch.sigmoid(x)

def _layernorm(x, axis=-1, eps=1e-05):
    m = x.mean(dim=axis, keepdim=True)
    v = x.var(dim=axis, keepdim=True, unbiased=False)
    return (x - m) / torch.sqrt(v + eps)

def _scatter_add(tgt, idx, src, axis=0):
    return tgt.clone().index_add_(axis, idx, src)

def _segment_sum(src, seg, n):
    out = torch.zeros((n,) + src.shape[1:], dtype=src.dtype)
    return out.index_add_(0, seg, src)

def _pad(x, pw):
    flat = tuple((v for pair in reversed(pw) for v in pair))
    return torch.nn.functional.pad(x, flat)
kernel_name = 'recurrent_scan__sliding_block_cached__mixer_gmlp__prompt'

def setup_inputs():

    _w = lambda a: (lambda t: t.to(torch.bfloat16) if t.is_floating_point() else t)(torch.as_tensor(a))

    def _A_setup():
        B, Sq, D = (1, 2048, 1024)
        Hq, Hkv, Sk, Dh = (32, 4, 2048, 128)
        assert Hq % Hkv == 0, (Hq, Hkv)
        return {'x': _w((lambda *s: torch.randn(*s, dtype=torch.bfloat16) * 0.05)(B, Sq, D)), 'k_cache': _w((lambda *s: torch.randn(*s, dtype=torch.bfloat16) * 0.8)(B, Hkv, Sk, Dh)), 'v_cache': _w((lambda *s: torch.randn(*s, dtype=torch.bfloat16) * 0.2)(B, Hkv, Sk, Dh)), 'wq': _w((lambda *s: torch.randn(*s, dtype=torch.bfloat16) * 0.8)(D, Hq * Dh) * D ** (-0.5)), 'wo': _w((lambda *s: torch.randn(*s, dtype=torch.bfloat16) * 0.2)(Hq * Dh, D) * (Hq * Dh) ** (-0.5))}
    _A_in = _A_setup()

    def _B_setup():
        B, S, D, F = (1, 2048, 1024, 3584)
        Fh = F // 2
        return {'x': _w((lambda *s: torch.randn(*s, dtype=torch.bfloat16) * 0.05)(B, S, D)), 'w_in': _w((lambda *s: torch.randn(*s, dtype=torch.bfloat16) * 0.4)(D, 2 * Fh)), 'w_sp': _w(0.01 * (lambda *s: torch.randn(*s, dtype=torch.bfloat16) * 0.4)(S, S)), 'b_sp': _w(1.0 + 0.01 * (lambda *s: torch.randn(*s, dtype=torch.bfloat16) * 0.1)(S)), 'w_out': _w((lambda *s: torch.randn(*s, dtype=torch.bfloat16) * 0.1)(Fh, D))}
    _B_in = _B_setup()
    return {'A_x': _A_in['x'], 'A_k_cache': _A_in['k_cache'], 'A_v_cache': _A_in['v_cache'], 'A_wq': _A_in['wq'], 'A_wo': _A_in['wo'], 'B_x': _B_in['x'], 'B_w_in': _B_in['w_in'], 'B_w_sp': _B_in['w_sp'], 'B_b_sp': _B_in['b_sp'], 'B_w_out': _B_in['w_out']}

def reference(A_x, A_k_cache, A_v_cache, A_wq, A_wo, B_x, B_w_in, B_w_sp, B_b_sp, B_w_out):

    def _A_ref(x, k_cache, v_cache, wq, wo):
        B, Sq, D = x.shape
        Hq, Dh = (32, 128)
        Hkv, Sk = (k_cache.shape[1], k_cache.shape[2])
        W = min(4096, max(256, Sk // 4))
        rep = Hq // Hkv
        q = (lambda x, *d: x.permute(*d))((x @ wq).reshape(B, Sq, Hq, Dh), 0, 2, 1, 3)
        k = (lambda x, n, axis: torch.repeat_interleave(x, n, dim=axis))(k_cache[:, :, Sk - W:, :], rep, axis=1)
        v = (lambda x, n, axis: torch.repeat_interleave(x, n, dim=axis))(v_cache[:, :, Sk - W:, :], rep, axis=1)
        scores = torch.einsum('bhqd,bhkd->bhqk', q, k) * Dh ** (-0.5)
        p = _softmax(scores, axis=-1)
        o = torch.einsum('bhqk,bhkd->bhqd', p, v)
        return (lambda x, *d: x.permute(*d))(o, 0, 2, 1, 3).reshape(B, Sq, Hq * Dh) @ wo

    def _B_ref(x, w_in, w_sp, b_sp, w_out):
        B, S, D = x.shape
        F = w_in.shape[-1]
        Fh = F // 2
        z = _gelu(torch.einsum('bsd,df->bsf', x, w_in))
        z1 = z[..., :Fh].clone()
        z2 = _layernorm(z[..., Fh:], axis=-1)
        g = torch.einsum('ts,bsf->btf', w_sp, z2) + b_sp[None, :, None]
        return torch.einsum('bsf,fd->bsd', z1 * g, w_out)
    x = A_x
    xn = _layernorm(x, axis=-1)
    s = _A_ref(xn, A_k_cache, A_v_cache, A_wq, A_wo)
    g = _silu(_B_ref(xn, B_w_in, B_w_sp, B_b_sp, B_w_out))
    return x + s * g
```

```python
class Asm:
    def __init__(self):
        self.lines = []
        self.uid = 0

    def __call__(self, s):
        for ln in s.split("\n"):
            ln = ln.rstrip()
            if ln.strip():
                self.lines.append("    " + ln.strip() if not ln.strip().endswith(":") else ln.strip())

    def raw(self, s):
        self.lines.append(s)

    def label(self, name):
        self.lines.append(name + ":")

    def newlabel(self, base):
        self.uid += 1
        return f"L_{base}_{self.uid}"

    def comment(self, s):
        self.lines.append("    ; " + s)

    def text(self):
        return "\n".join(self.lines) + "\n"


def vr(base, n=1):
    return f"v{base}" if n == 1 else f"v[{base}:{base+n-1}]"


def ar(base, n=1):
    return f"a{base}" if n == 1 else f"a[{base}:{base+n-1}]"


def sr(base, n=1):
    return f"s{base}" if n == 1 else f"s[{base}:{base+n-1}]"


def interleave(a, mains, fillers):
    for f in fillers.get(-1, []):
        a(f)
    for i, m in enumerate(mains):
        a(m)
        for f in fillers.get(i, []):
            a(f)


def spread(items, gaps):
    d = {}
    n = len(items)
    g = len(gaps)
    for i, it in enumerate(items):
        gi = gaps[(i * g) // n] if n > g else gaps[i]
        d.setdefault(gi, []).append(it)
    return d


def merge(*ds):
    out = {}
    for d in ds:
        for k, v in d.items():
            out.setdefault(k, []).extend(v)
    return out


def kernel_header(a, name):
    a.raw(".text")
    a.raw(f".globl {name}")
    a.raw(".p2align 8")
    a.raw(f".type {name},@function")
    a.label(name)


def kernel_desc(name, vgpr, sgpr, accum):
    return f""".section .rodata,"a"
.p2align 6
.amdhsa_kernel {name}
  .amdhsa_next_free_vgpr {vgpr}
  .amdhsa_next_free_sgpr {sgpr}
  .amdhsa_accum_offset {accum}
  .amdhsa_group_segment_fixed_size 0
  .amdhsa_kernarg_size 104
  .amdhsa_user_sgpr_count 2
  .amdhsa_user_sgpr_kernarg_segment_ptr 1
  .amdhsa_system_sgpr_workgroup_id_x 1
.end_amdhsa_kernel
"""


def make_srd(a, d, base, nbytes, add=None):
    if add:
        a(f"s_add_u32 s{d}, s{base}, {add:#x}")
        a(f"s_addc_u32 s{d+1}, s{base+1}, 0")
    else:
        a(f"s_mov_b32 s{d}, s{base}")
        a(f"s_mov_b32 s{d+1}, s{base+1}")
    a(f"s_mov_b32 s{d+2}, {nbytes:#x}")
    a(f"s_mov_b32 s{d+3}, 0x20000")
```

```python
from asmlib import *


def place(nm, streams):
    d = {}
    for items, lo, hi in streams:
        n = len(items)
        if n == 0:
            continue
        for i, it in enumerate(items):
            g = lo + (i * (hi - lo + 1)) // n
            g = max(-1, min(nm - 1, g))
            d.setdefault(g, []).append(it)
    return d


def snake(FA, FB):
    order = []
    for fa in range(FA):
        r = range(FB) if fa % 2 == 0 else range(FB - 1, -1, -1)
        for fb in r:
            order.append((fa, fb))
    return order


class Gemm:
    def mfmas(self, p, first):
        m = []
        for (x, y) in snake(self.FA, self.FB):
            c = self.acc(x, y)
            m.append(f"v_mfma_f32_16x16x32_bf16 {c}, v[{self.fa(p,x)}:{self.fa(p,x)+3}], v[{self.fb(p,y)}:{self.fb(p,y)+3}], {'0' if first else c}")
        return m

    def prologue_dma(self, a, tiles=None):
        for t in range(self.S) if tiles is None else tiles:
            for ins in self.dma_tile(t % self.S, tight=True):
                a(ins)

    def first_reads(self, a, outstanding_after=0):
        a(f"s_waitcnt vmcnt({(self.S-1)*self.P2 + outstanding_after})")
        a("s_barrier")
        for r in self.reads(0, 0, 0):
            a(r)

    def step(self, a, t, pend, extra=None):
        NT, KS, S, P2 = self.NT, self.KS, self.S, self.P2
        NM = self.FA * self.FB
        stage = t % S
        nxt = []
        for sub in range(KS):
            p = (t * KS + sub) & 1
            lastsub = sub == KS - 1
            last = lastsub and t == NT - 1
            pre = []
            dm = []
            if lastsub:
                if not last:
                    n_out = P2 * (min(t - 1 + S, NT - 1) - (t + 1))
                    if t == 0 and getattr(self, "first_wait", None) is not None:
                        n_out = self.first_wait
                    pre = [f"s_waitcnt vmcnt({n_out}) lgkmcnt(0)", "s_barrier"]
                    rd = self.reads((stage + 1) % S, 0, p ^ 1)
                    if t + S < NT:
                        g = self.dma_tile(stage)
                        if KS == 1:
                            dm = g
                        else:
                            cut = self.split_point(g)
                            dm, nxt = g[:cut], g[cut:]
                else:
                    pre = ["s_waitcnt lgkmcnt(0)"]
                    rd = []
            else:
                pre = ["s_waitcnt lgkmcnt(0)"]
                rd = self.reads(stage, sub + 1, p ^ 1)
                if pend:
                    per = -(-len(pend) // (KS - 1 - sub))
                    dm, pend = pend[:per], pend[per:]
            rhi = max(len(rd) - 1, (NM * 3) // 4)
            streams = [(rd, 0, min(rhi, NM - 1)), (dm, 1, NM - 2)]
            if extra is not None:
                ex = extra(t, sub)
                if ex:
                    streams.append((ex, 0, NM - 1))
            fill = place(NM, streams)
            fill[-1] = pre + fill.get(-1, [])
            interleave(a, self.mfmas(p, t == 0 and sub == 0 and not getattr(self, "accumulate", False)), fill)
        return nxt

    def split_point(self, g):
        n = len(g) // 2
        while n < len(g) and ("m0" in g[n - 1]):
            n += 1
        return n

    def loop(self, a, unroll_all=False, extra=None):
        NT, S, KS = self.NT, self.S, self.KS
        U = S if (S * KS) % 2 == 0 else 2 * S
        steady_end = NT - S
        h = 1
        while (steady_end - h) % U != 0:
            h += 1
        n = (steady_end - h) // U
        pend = []
        if unroll_all or n <= 1:
            for t in range(NT):
                pend = self.step(a, t, pend, extra)
            return
        for t in range(h):
            pend = self.step(a, t, pend, extra)
        lab = a.newlabel(self.name + "_loop")
        a(f"s_mov_b32 s{self.loopreg}, {n}")
        a.raw(".p2align 3")
        a.label(lab)
        for t in range(h, h + U):
            pend = self.step(a, t, pend, extra)
        a(f"s_sub_u32 s{self.loopreg}, s{self.loopreg}, 1")
        a(f"s_cmp_lg_u32 s{self.loopreg}, 0")
        a(f"s_cbranch_scc1 {lab}")
        for t in range(h + n * U, NT):
            pend = self.step(a, t, pend, extra)
```

```python
import sys, json, math, struct
from asmlib import *
from core import *

NAME = "recurrent_scan__sliding_block_cached__mixer_gmlp__prompt"
MB = 1 << 20
WS_XN = 0
WS_O = 4 * MB
WS_U = 20 * MB
WS_Z2 = 28 * MB
WS_STAT = 36 * MB
WS_FLAG = 37 * MB
WS_DBG = 64 * MB
WS_DIAG = 128 * MB

ARG = dict(x=0, k=8, v=16, wq=24, wo=32, bx=40, w_in=48, w_sp=56, b_sp=64, w_out=72, out=80, dbg=88, ws=96)


def f2u(x):
    return struct.unpack("<I", struct.pack("<f", x))[0]


def diag_start(a, cfg, s):
    if cfg.get("diag"):
        a(f"s_memtime s[{s}:{s+1}]")
        a(f"s_memrealtime s[{s+2}:{s+3}]")
        a("s_waitcnt lgkmcnt(0)")


def diag_mark(a, cfg, s):
    if cfg.get("diag"):
        a("s_waitcnt lgkmcnt(0)")
        a(f"s_memtime s[{s}:{s+1}]")
        a(f"s_memrealtime s[{s+2}:{s+3}]")
        a("s_waitcnt lgkmcnt(0)")


def diag_end(a, cfg, s, kidx, wsptr, swave, nmarks=0):
    if not cfg.get("diag"):
        return
    a("s_waitcnt vmcnt(0) lgkmcnt(0)")
    a(f"s_memtime s[{s+4}:{s+5}]")
    a(f"s_memrealtime s[{s+6}:{s+7}]")
    a("s_waitcnt lgkmcnt(0)")
    skip = a.newlabel("nodiag")
    a(f"s_cmp_lg_u32 s{swave}, 0")
    a(f"s_cbranch_scc1 {skip}")
    a(f"s_lshl_b32 s{s+8}, s2, 7")
    a(f"s_add_u32 s{s+8}, s{s+8}, {WS_DIAG + kidx * 65536:#x}")
    a(f"v_mov_b32 v1, s{s+8}")
    regs = [s + i for i in range(8)]
    for m in range(nmarks):
        regs += [s + 12 + 4 * m, s + 12 + 4 * m + 2]
    a("s_mov_b64 exec, 1")
    for i, r in enumerate(regs):
        a(f"v_mov_b32 v2, s{r}")
        a(f"global_store_dword v1, v2, s[{wsptr}:{wsptr+1}] offset:{4*i}")
    a(f"s_getreg_b32 s{s+8}, hwreg(HW_REG_XCC_ID)")
    a(f"v_mov_b32 v2, s{s+8}")
    a(f"global_store_dword v1, v2, s[{wsptr}:{wsptr+1}] offset:{4*31}")
    a("s_waitcnt vmcnt(0)")
    a.label(skip)


def xlane_sum_16_32(a, v, t):
    a(f"v_mov_b32 v{t}, v{v}")
    a("s_nop 1")
    a(f"v_permlane16_swap_b32 v{v}, v{t}")
    a("s_nop 1")
    a(f"v_add_f32 v{v}, v{v}, v{t}")
    a(f"v_mov_b32 v{t}, v{v}")
    a("s_nop 1")
    a(f"v_permlane32_swap_b32 v{v}, v{t}")
    a("s_nop 1")
    a(f"v_add_f32 v{v}, v{v}, v{t}")


def xlane_sum_8_16_32(a, v, t):
    a("s_nop 1")
    a(f"v_mov_b32_dpp v{t}, v{v} row_ror:8 row_mask:0xf bank_mask:0xf")
    a(f"v_add_f32 v{v}, v{v}, v{t}")
    xlane_sum_16_32(a, v, t)


def round_bf16(a, v):
    a(f"v_cvt_pk_bf16_f32 v{v}, v{v}, v{v}")
    a(f"v_and_b32 v{v}, 0xffff0000, v{v}")


def gen_k0(a, cfg):
    name = "ln_kernel"
    kernel_header(a, name)
    a("s_cmp_ge_u32 s2, 256")
    a("s_cbranch_scc1 L_k0_end")
    a(f"s_load_dwordx2 s[4:5], s[0:1], {ARG['x']}")
    a(f"s_load_dwordx2 s[6:7], s[0:1], {ARG['ws']}")
    diag_start(a, cfg, 40)
    a("v_and_b32 v1, 63, v0")
    a("v_lshrrev_b32 v2, 6, v0")
    a("v_and_b32 v3, 7, v1")
    a("v_lshrrev_b32 v4, 3, v1")
    a("s_lshl_b32 s3, s2, 3")
    a("v_add_u32 v5, s3, v3")
    a("v_lshlrev_b32 v6, 11, v5")
    a("v_lshl_add_u32 v7, v2, 5, v4")
    a("v_lshl_add_u32 v6, v7, 4, v6")
    a("v_readfirstlane_b32 s20, v2")
    a("s_waitcnt lgkmcnt(0)")
    make_srd(a, 8, 4, 2048 * 1024 * 2)
    make_srd(a, 12, 6, 2048 * 1024 * 2, add=WS_XN)
    for i in range(4):
        a(f"buffer_load_dwordx4 v[{16+4*i}:{19+4*i}], v6, s[8:11], 0 offen offset:{128*i}")
    make_srd(a, 24, 6, 32 * 1024, add=WS_FLAG)
    a("s_lshl_b32 s16, s2, 10")
    a("v_lshlrev_b32 v9, 2, v0")
    a("v_add_u32 v9, s16, v9")
    a("v_mov_b32 v10, 0")
    a("buffer_store_dword v10, v9, s[24:27], 0 offen")
    a("v_lshrrev_b32 v8, 5, v1")
    a("v_lshl_add_u32 v8, v2, 3, v8")
    a("v_lshlrev_b32 v8, 17, v8")
    a("v_lshrrev_b32 v9, 4, v5")
    a("v_lshl_add_u32 v8, v9, 10, v8")
    a("v_and_b32 v9, 3, v4")
    a("v_lshl_add_u32 v8, v9, 8, v8")
    a("v_and_b32 v9, 15, v5")
    a("v_lshl_add_u32 v8, v9, 4, v8")
    a("v_lshl_add_u32 v10, v2, 3, v3")
    a("v_lshlrev_b32 v10, 2, v10")
    a("v_lshlrev_b32 v11, 2, v3")
    X = 32
    for i in range(4):
        a(f"s_waitcnt vmcnt({4-i})")
        for j in range(4):
            r = 16 + 4 * i + j
            a(f"v_lshlrev_b32 v{X+8*i+2*j}, 16, v{r}")
            a(f"v_and_b32 v{X+8*i+2*j+1}, 0xffff0000, v{r}")
    for c in range(4):
        a(f"v_add_f32 v{12+c}, v{X+c}, v{X+4+c}")
    for j in range(2, 8):
        for c in range(4):
            a(f"v_add_f32 v{12+c}, v{12+c}, v{X+4*j+c}")
    a("v_add_f32 v12, v12, v13")
    a("v_add_f32 v14, v14, v15")
    a("v_add_f32 v12, v12, v14")
    xlane_sum_8_16_32(a, 12, 13)
    a("ds_write_b32 v10, v12")
    a("s_waitcnt lgkmcnt(0)")
    a("s_barrier")
    a("ds_read2_b32 v[12:13], v11 offset0:0 offset1:8")
    a("ds_read2_b32 v[14:15], v11 offset0:16 offset1:24")
    a("s_waitcnt lgkmcnt(0)")
    a("v_add_f32 v12, v12, v13")
    a("v_add_f32 v14, v14, v15")
    a("v_add_f32 v12, v12, v14")
    a("v_mul_f32 v16, 0x3a800000, v12")
    for c in range(4):
        a(f"v_sub_f32 v{18+c}, v{X+c}, v16")
        a(f"v_mul_f32 v{12+c}, v{18+c}, v{18+c}")
    for j in range(1, 8):
        for c in range(4):
            a(f"v_sub_f32 v{18+c}, v{X+4*j+c}, v16")
        for c in range(4):
            a(f"v_fmac_f32 v{12+c}, v{18+c}, v{18+c}")
    a("v_add_f32 v12, v12, v13")
    a("v_add_f32 v14, v14, v15")
    a("v_add_f32 v12, v12, v14")
    xlane_sum_8_16_32(a, 12, 13)
    a("ds_write_b32 v10, v12 offset:128")
    a("s_waitcnt lgkmcnt(0)")
    a("s_barrier")
    a("ds_read2_b32 v[12:13], v11 offset0:32 offset1:40")
    a("ds_read2_b32 v[14:15], v11 offset0:48 offset1:56")
    round_bf16(a, 16)
    a("s_waitcnt lgkmcnt(0)")
    a("v_add_f32 v12, v12, v13")
    a("v_add_f32 v14, v14, v15")
    a("v_add_f32 v12, v12, v14")
    a("v_mul_f32 v12, 0x3a800000, v12")
    round_bf16(a, 12)
    a("v_add_f32 v12, 0x3727c5ac, v12")
    round_bf16(a, 12)
    a("v_sqrt_f32 v12, v12")
    a("s_nop 0")
    round_bf16(a, 12)
    a("v_rcp_f32 v12, v12")
    for j in range(16):
        a(f"v_sub_f32 v{X+2*j}, v{X+2*j}, v16")
        a(f"v_sub_f32 v{X+2*j+1}, v{X+2*j+1}, v16")
        a(f"v_cvt_pk_bf16_f32 v17, v{X+2*j}, v{X+2*j+1}")
        a(f"v_lshlrev_b32 v{X+2*j}, 16, v17")
        a(f"v_and_b32 v{X+2*j+1}, 0xffff0000, v17")
        a(f"v_mul_f32 v{X+2*j}, v{X+2*j}, v12")
        a(f"v_mul_f32 v{X+2*j+1}, v{X+2*j+1}, v12")
        a(f"v_cvt_pk_bf16_f32 v{64+j}, v{X+2*j}, v{X+2*j+1}")
        if j % 4 == 3:
            i = j // 4
            a(f"s_mov_b32 s16, {i*262144}")
            a(f"buffer_store_dwordx4 v[{64+4*i}:{67+4*i}], v8, s[12:15], s16 offen")
    diag_end(a, cfg, 40, 0, 6, 20)
    a.label("L_k0_end")
    a("s_endpgm")
    return (name, 256, 256, 512, kernel_desc(name, 80, 64, 80))


SA, SB, SC, SD = 4, 8, 12, 16
sWAVE, sWA, sWB, sRB, sJ = 20, 21, 22, 23, 24
sOFFA, sOFFB, sSTEPA, sLW, sLOOP, sT0, sT1, sT2 = 26, 27, 28, 29, 30, 31, 25, 3
sWS = 32
sDIAG = 56


def lane_fields(a):
    a("v_and_b32 v1, 63, v0")
    a("v_lshrrev_b32 v2, 4, v1")
    a("v_bfe_u32 v3, v1, 2, 2")
    a("v_and_b32 v4, 3, v1")


class Phase1(Gemm):
    name = "p1"
    NT, KS, S, P2, FA, FB = 32, 1, 4, 8, 8, 8
    STG = 32768
    loopreg = sLOOP
    VDA, VDB, VA, VB, FR = 8, 12, 16, 32, (64, 128)

    def fa(self, p, f): return self.FR[p] + 4 * f
    def fb(self, p, f): return self.FR[p] + 32 + 4 * f
    def accn(self, x, y): return (x * 8 + y) * 4
    def acc(self, x, y): return f"a[{self.accn(x,y)}:{self.accn(x,y)+3}]"

    def dma_tile(self, stage, tight=False):
        g = [f"s_add_u32 m0, s{sLW}, {stage*self.STG}"]
        if tight: g.append("s_nop 0")
        for i in range(4):
            g.append(f"buffer_load_dwordx4 v{self.VDA+i}, s[{SA}:{SA+3}], s{sOFFA} offen offset:{1024*i} lds")
        g.append(f"s_add_u32 m0, s{sLW}, {stage*self.STG+16384}")
        g.append(f"s_add_u32 s{sOFFA}, s{sOFFA}, s{sSTEPA}")
        for i in range(4):
            g.append(f"buffer_load_dwordx4 v{self.VDB}, s[{SB}:{SB+3}], s{sOFFB} offen offset:{1024*i} lds")
        g.append(f"s_add_u32 s{sOFFB}, s{sOFFB}, 131072")
        return g

    def reads(self, stage, sub, p):
        hi = stage >> 1
        so = (stage & 1) * self.STG
        r = []
        for f in range(8):
            r.append(f"ds_read_b128 v[{self.fb(p,f)}:{self.fb(p,f)+3}], v{self.VB+hi} offset:{so + f*1024}")
            for u in range(2):
                r.append(f"ds_read_b64_tr_b16 v[{self.fa(p,f)+2*u}:{self.fa(p,f)+2*u+1}], v{self.VA+8*hi+f} offset:{so + u*2048}")
        return r

    def setup_dma(self, a, sRS, sC1, sC2):
        a("v_lshrrev_b32 v5, 5, v1")
        a(f"s_lshl_b32 s{sT0}, s{sWAVE}, 3")
        a(f"v_add_u32 v5, s{sT0}, v5")
        a("v_and_b32 v6, 31, v1")
        for i in range(4):
            a(f"v_add_u32 v7, {2*i}, v5")
            a("v_and_b32 v13, 3, v7")
            a("v_bfe_u32 v14, v7, 3, 1")
            a("v_lshl_add_u32 v13, v14, 2, v13")
            a("v_lshlrev_b32 v13, 1, v13")
            a("v_xor_b32 v13, v13, v6")
            a(f"v_mul_lo_u32 v7, v7, s{sRS}")
            a("v_and_b32 v14, 7, v13")
            a("v_lshl_add_u32 v7, v14, 4, v7")
            a("v_bfe_u32 v14, v13, 3, 1")
            a(f"v_mad_u32_u24 v7, v14, s{sC1}, v7")
            a("v_lshrrev_b32 v14, 4, v13")
            a(f"v_mad_u32_u24 v7, v14, s{sC2}, v7")
            a(f"v_subrev_u32 v{self.VDA+i}, {1024*i}, v7")
        a(f"v_lshlrev_b32 v{self.VDB}, 4, v1")

    def setup_reads(self, a):
        a("v_lshl_add_u32 v5, v2, 3, v3")
        a("v_lshlrev_b32 v5, 9, v5")
        a("v_lshrrev_b32 v6, 1, v4")
        a(f"s_lshl_b32 s{sT0}, s{sWA}, 4")
        a(f"v_add_u32 v6, s{sT0}, v6")
        a("v_lshl_add_u32 v5, v6, 4, v5")
        a("v_and_b32 v6, 1, v4")
        a("v_lshl_add_u32 v5, v6, 3, v5")
        a("v_and_b32 v6, 1, v2")
        a("v_lshl_add_u32 v6, v6, 2, v3")
        for f in range(8):
            a(f"v_xor_b32 v7, {f}, v6")
            a(f"v_lshl_add_u32 v{self.VA+f}, v7, 5, v5")
            a(f"v_add_u32 v{self.VA+8+f}, 0x10000, v{self.VA+f}")
        a(f"s_lshl_b32 s{sT0}, s{sWB}, 13")
        a(f"s_add_u32 s{sT0}, s{sT0}, 16384")
        a(f"v_lshlrev_b32 v{self.VB}, 4, v1")
        a(f"v_add_u32 v{self.VB}, s{sT0}, v{self.VB}")
        a(f"v_add_u32 v{self.VB+1}, 0x10000, v{self.VB}")


SIGMA_NOTE = "after permlane16_swap lane quarter qq holds 8-col chunk sigma(qq) = [0,2,1,3][qq]"


def emit_sigma(a, dst, q, t):
    a(f"v_and_b32 v{t}, 1, v{q}")
    a(f"v_lshlrev_b32 v{t}, 1, v{t}")
    a(f"v_lshrrev_b32 v{dst}, 1, v{q}")
    a(f"v_or_b32 v{dst}, v{dst}, v{t}")


class LgkmTracker:
    def __init__(self, a, lag=6):
        self.a = a; self.n = 0; self.done = -1; self.reg = {}; self.lag = lag

    def load(self, ins, regs):
        self.a(ins)
        for r in regs: self.reg[r] = self.n
        self.n += 1

    def need(self, regs):
        idx = max([self.reg.get(r, -1) for r in regs] + [-1])
        if idx > self.done:
            tgt = max(idx, self.n - 1 - self.lag)
            self.a(f"s_waitcnt lgkmcnt({min(15, self.n - 1 - tgt)})")
            self.done = tgt

    def all_done(self):
        self.done = self.n - 1


class VmTracker:
    def __init__(self):
        self.tags = []

    def issue(self, tag):
        self.tags.append(tag)

    def count_after(self, tag):
        last = max(i for i, t in enumerate(self.tags) if t == tag)
        return len(self.tags) - 1 - last


def gen_attention(a, cfg, P1):
    KD, VD, KA, VA_, ONES, LA, SB_, PB, KF, VF, T = 8, 12, 16, 24, 40, 44, 64, 128, 160, 192, 224
    sKV, sOB, sFAIL = 34, 35, 50
    vST = 60
    STG = 32768
    use_ones = cfg.get("ones", 1)
    Qr = lambda qt, p: P1.accn(2 * p, qt)
    def Or(dt, qt):
        n = dt * 4 + qt
        return P1.accn(2 * (n >> 3) + 1, n & 7)
    Sr = lambda sb, kt, qt: SB_ + 32 * sb + (kt * 4 + qt) * 4
    Pr = lambda pb, qt: PB + 16 * pb + 4 * qt
    Kf = lambda kt, p: KF + (kt * 4 + p) * 4
    Vf = lambda dt: VF + 4 * dt
    make_srd(a, SA, 36, 4 * 2048 * 128 * 2)
    make_srd(a, SB, 38, 4 * 2048 * 128 * 2)
    make_srd(a, SC, sWS, 16 * MB, add=WS_O)
    a(f"s_lshr_b32 s{sKV}, s{sJ}, 2")
    a(f"s_lshl_b32 s{sKV}, s{sKV}, 19")
    a(f"s_add_u32 s{sKV}, s{sKV}, {1536*256}")
    a(f"s_lshl_b32 s{sT0}, s{sWAVE}, 4")
    a(f"v_add_u32 v5, s{sT0}, v2")
    a("v_lshlrev_b32 v5, 8, v5")
    a("v_and_b32 v6, 15, v1")
    for i in range(4):
        a(f"v_add_u32 v7, {4*i}, v2")
        a("v_xor_b32 v61, v7, v6")
        a(f"v_lshl_add_u32 v{KD+i}, v61, 4, v5")
        a("v_and_b32 v7, 7, v7")
        a("v_lshlrev_b32 v7, 1, v7")
        a("v_xor_b32 v61, v7, v6")
        a(f"v_lshl_add_u32 v{VD+i}, v61, 4, v5")
    vm = VmTracker()

    def unit_dma(m):
        g = []
        sl = (m % 4) * STG
        if m <= 15:
            g.append((f"s_add_u32 m0, s{sLW}, {sl}", None))
            g.append((f"s_add_u32 s{sOFFA}, s{sKV}, {(m & 7) * 16384}", None))
            for i in range(4):
                g.append((f"buffer_load_dwordx4 v{KD+i}, s[{SA}:{SA+3}], s{sOFFA} offen offset:{1024*i} lds", m))
        if m >= 1:
            g.append((f"s_add_u32 m0, s{sLW}, {sl+16384}", None))
            g.append((f"s_add_u32 s{sOFFB}, s{sKV}, {((m - 1) & 7) * 16384}", None))
            for i in range(4):
                g.append((f"buffer_load_dwordx4 v{VD+i}, s[{SB}:{SB+3}], s{sOFFB} offen offset:{1024*i} lds", m))
        return g

    def emit_vm(x):
        ins, tag = x
        a(ins)
        if tag is not None:
            vm.issue(tag)

    a("s_barrier")
    for m in range(4):
        for x in unit_dma(m):
            emit_vm(x)
    emit_sigma(a, 62, 2, 63)
    a("v_and_b32 v6, 15, v1")
    for p in range(4):
        a(f"v_add_u32 v7, {4*p}, v62")
        a("v_xor_b32 v7, v7, v6")
        a("v_lshlrev_b32 v7, 4, v7")
        a(f"v_lshl_add_u32 v{KA+p}, v6, 8, v7")
        a(f"v_add_u32 v{KA+4+p}, 0x10000, v{KA+p}")
    a("v_lshl_add_u32 v5, v2, 2, v3")
    a("v_and_b32 v7, 7, v5")
    a("v_lshlrev_b32 v5, 8, v5")
    a("v_lshrrev_b32 v61, 1, v4")
    a("v_lshl_add_u32 v5, v61, 4, v5")
    a("v_and_b32 v61, 1, v4")
    a("v_lshl_add_u32 v5, v61, 3, v5")
    for dt in range(8):
        a(f"v_xor_b32 v61, {dt}, v7")
        a(f"v_lshl_add_u32 v{VA_+dt}, v61, 5, v5")
        a(f"v_add_u32 v{VA_+8+dt}, 0x10000, v{VA_+dt}")
    a(f"v_lshl_add_u32 v{vST}, v62, 4, v6")
    a(f"v_lshlrev_b32 v{vST}, 4, v{vST}")
    a(f"s_lshl_b32 s{sOB}, s{sJ}, 1")
    a(f"s_add_u32 s{sOB}, s{sOB}, s{sWA}")
    a(f"s_lshl_b32 s{sOB}, s{sOB}, 9")
    a(f"s_lshl_b32 s{sT0}, s{sRB}, 4")
    a(f"s_add_u32 s{sOB}, s{sOB}, s{sT0}")
    a(f"s_lshl_b32 s{sT0}, s{sWB}, 3")
    a(f"s_add_u32 s{sOB}, s{sOB}, s{sT0}")
    a(f"s_lshl_b32 s{sOB}, s{sOB}, 10")
    for i in range(4):
        a(f"v_mov_b32 v{ONES+i}, 0x3f803f80")
    a(f"s_mov_b64 s[{sFAIL}:{sFAIL+1}], 0")
    a(f"s_mov_b32 s{sT1}, {f2u(128 ** -0.5 * math.log2(math.e)):#x}")
    k = 0
    for qt in range(8):
        for p in range(4):
            tb = T + 16 * (k & 1); k += 1
            for j in range(4):
                a(f"v_accvgpr_read_b32 v{tb+j}, a{P1.accn(2*p, qt)+j}")
                a(f"v_accvgpr_read_b32 v{tb+4+j}, a{P1.accn(2*p+1, qt)+j}")
            for j in range(8):
                a(f"v_mul_f32 v{tb+j}, s{sT1}, v{tb+j}")
            for j in range(4):
                a(f"v_cvt_pk_bf16_f32 v{tb+8+j}, v{tb+2*j}, v{tb+2*j+1}")
            a("s_nop 0")
            a(f"v_permlane16_swap_b32 v{tb+8}, v{tb+10}")
            a(f"v_permlane16_swap_b32 v{tb+9}, v{tb+11}")
            a("s_nop 0")
            for j in range(4):
                a(f"v_accvgpr_write_b32 a{Qr(qt,p)+j}, v{tb+8+j}")
    diag_mark(a, cfg, sDIAG + 12 + 4 * 2)
    lg = LgkmTracker(a)

    def k_read(G, kt, p):
        m = G >> 1
        sl = m % 4
        return (f"ds_read_b128 v[{Kf(kt,p)}:{Kf(kt,p)+3}], v{KA+4*(sl>>1)+p} offset:{(sl&1)*STG + (G&1)*8192 + kt*4096}", list(range(Kf(kt, p), Kf(kt, p) + 4)))

    def v_read(G, dt, u):
        sl = ((G >> 1) + 1) % 4
        r = Vf(dt) + 2 * u
        return (f"ds_read_b64_tr_b16 v[{r}:{r+1}], v{VA_+8*(sl>>1)+dt} offset:{(sl&1)*STG + 16384 + (G&1)*8192 + u*4096}", [r, r + 1])

    def epilogue(h):
        a("s_nop 7")
        a("s_nop 1")
        a(f"s_mov_b32 s{sT0}, {f2u(2.0**-40):#x}")
        a(f"s_mov_b32 s{sT2}, {f2u(2.0**40):#x}")
        RL = T + 28
        for qt in range(4):
            l = LA + 4 * qt
            if not use_ones:
                xlane_sum_16_32(a, l, T)
            a(f"v_cmp_nle_f32 vcc, s{sT0}, v{l}")
            a(f"s_or_b64 s[{sFAIL}:{sFAIL+1}], s[{sFAIL}:{sFAIL+1}], vcc")
            a(f"v_cmp_nge_f32 vcc, s{sT2}, v{l}")
            a(f"s_or_b64 s[{sFAIL}:{sFAIL+1}], s[{sFAIL}:{sFAIL+1}], vcc")
            a(f"v_rcp_f32 v{RL+qt}, v{l}")
            if not use_ones:
                a(f"v_mov_b32 v{l}, 0")
                a(f"v_mov_b32 v{l+1}, 0")
        k = 0
        for p in range(4):
            a(f"s_add_u32 s{sT0}, s{sOB}, {p*131072 + 4*h*1024}")
            for qt in range(4):
                tb = T + 12 * (k & 1); k += 1
                for j in range(4):
                    a(f"v_accvgpr_read_b32 v{tb+j}, a{Or(2*p,qt)+j}")
                    a(f"v_accvgpr_read_b32 v{tb+4+j}, a{Or(2*p+1,qt)+j}")
                for j in range(8):
                    a(f"v_mul_f32 v{tb+j}, v{RL+qt}, v{tb+j}")
                for j in range(4):
                    a(f"v_cvt_pk_bf16_f32 v{tb+8+j}, v{tb+2*j}, v{tb+2*j+1}")
                a("s_nop 0")
                a(f"v_permlane16_swap_b32 v{tb+8}, v{tb+10}")
                a(f"v_permlane16_swap_b32 v{tb+9}, v{tb+11}")
                a(f"buffer_store_dwordx4 v[{tb+8}:{tb+11}], v{vST}, s[{SC}:{SC+3}], s{sT0} offen offset:{qt*1024}")
                vm.issue("st")

    if not use_ones:
        for qt in range(4):
            a(f"v_mov_b32 v{LA+4*qt}, 0")
            a(f"v_mov_b32 v{LA+4*qt+1}, 0")
    pend_dma = []
    for g in range(-3, 32):
        GA, GB, GC, GK, GV = g + 2, g + 1, g, g + 3, g + 1
        doA, doB, doC = 0 <= GA < 32, 0 <= GB < 32, 0 <= GC < 32
        doK, doV = 0 <= GK < 32, 0 <= GV < 32
        blocks = []
        for b in range(8):
            kt, p = b >> 2, b & 3
            ms = []
            if doA:
                for qt in range(4):
                    s = Sr(GA & 1, kt, qt)
                    q = Qr(4 * (GA >> 4) + qt, p)
                    c = "0" if p == 0 else f"v[{s}:{s+3}]"
                    ms.append((f"v_mfma_f32_16x16x32_bf16 v[{s}:{s+3}], v[{Kf(kt,p)}:{Kf(kt,p)+3}], a[{q}:{q+3}], {c}", list(range(Kf(kt, p), Kf(kt, p) + 4))))
            blocks.append((ms, [k_read(GK, kt, p)] if doK else []))
            ms = []
            if doC:
                for qt in range(4):
                    o = Or(b, qt)
                    pr = Pr(GC & 1, qt)
                    c = "0" if GC % 16 == 0 else f"a[{o}:{o+3}]"
                    ms.append((f"v_mfma_f32_16x16x32_bf16 a[{o}:{o+3}], v[{Vf(b)}:{Vf(b)+3}], v[{pr}:{pr+3}], {c}", list(range(Vf(b), Vf(b) + 4))))
            blocks.append((ms, [v_read(GV, b, 0), v_read(GV, b, 1)] if doV else []))
        if doC and use_ones:
            ms = []
            for qt in range(4):
                l = LA + 4 * qt
                pr = Pr(GC & 1, qt)
                c = "0" if GC % 16 == 0 else f"v[{l}:{l+3}]"
                ms.append((f"v_mfma_f32_16x16x32_bf16 v[{l}:{l+3}], v[{ONES}:{ONES+3}], v[{pr}:{pr+3}], {c}", []))
            blocks.insert(cfg.get("ones_pos", 8), (ms, []))
        valu = []
        if doB:
            sb, pb = GB & 1, GB & 1
            tiles = [(kt, qt) for kt in range(2) for qt in range(4)]
            prev = []
            for (kt, qt) in tiles:
                s = Sr(sb, kt, qt)
                ex = [f"v_exp_f32 v{s+j}, v{s+j}" for j in range(4)]
                valu.append(ex[0]); valu += prev[:1]; valu.append(ex[1]); valu += prev[1:2]
                valu.append(ex[2]); valu += prev[2:4]; valu.append(ex[3]); valu += prev[4:]
                prev = [f"v_cvt_pk_bf16_f32 v{Pr(pb,qt)+2*kt}, v{s}, v{s+1}", f"v_cvt_pk_bf16_f32 v{Pr(pb,qt)+2*kt+1}, v{s+2}, v{s+3}"]
                if not use_ones:
                    l = LA + 4 * qt + 2 * ((GB >> 4) & 1)
                    raise SystemExit("VALU row-sum variant not wired yet")
            valu.append("s_nop 0")
            valu += prev
        bar = (g % 2 != 0) and (g + 3) // 2 <= 16
        Tn = (g + 3) // 2
        nm = sum(len(b[0]) for b in blocks)
        barpos = cfg.get("att_barpos", 3) if nm >= 32 else 0
        cost = lambda ins: 2 if ins.startswith("v_exp") else 1
        vtot = sum(cost(x) for x in valu)
        mi = 0
        vi = 0
        vdone = 0
        held = []
        rq = []
        dma = pend_dma
        pend_dma = []
        for bi, (ms, rl) in enumerate(blocks):
            if bar and bi == barpos:
                a(f"s_waitcnt vmcnt({vm.count_after(Tn)}) lgkmcnt(0)")
                lg.all_done()
                a("s_barrier")
                if Tn >= 1 and Tn + 3 <= 16:
                    u = unit_dma(Tn + 3)
                    cut = len(u) // 2
                    dma = dma + u[:cut]
                    pend_dma = u[cut:]
                rq += held
                held = []
            for j, (ins, regs) in enumerate(ms):
                lg.need(regs)
                a(ins)
                mi += 1
                budget = 2
                tgt = (mi * vtot) / nm
                while vi < len(valu) and vdone + cost(valu[vi]) <= tgt + 1 and (budget >= cost(valu[vi]) or vdone + 3 < tgt):
                    budget -= cost(valu[vi]); vdone += cost(valu[vi])
                    a(valu[vi]); vi += 1
                while budget > 0 and (rq or dma):
                    if rq:
                        lg.load(*rq.pop(0))
                    else:
                        emit_vm(dma.pop(0))
                    budget -= 1
            if bar and bi < barpos:
                held += rl
            else:
                rq += rl
            if nm == 0:
                for x in rq:
                    lg.load(*x)
                rq = []
        while vi < len(valu):
            a(valu[vi]); vi += 1
        for x in rq:
            lg.load(*x)
        for x in dma:
            emit_vm(x)
        if g in (15, 31):
            epilogue(g >> 4)
            if g == 15:
                diag_mark(a, cfg, sDIAG + 12 + 4 * 3)
                lg.all_done()


def gelu_ops(x, t):
    return [f"v_mul_f32 v{t}, v{x}, v{x}",
            f"v_fma_f32 v{t}, v{t}, s53, v{59}",
            f"v_mul_f32 v{t}, v{t}, v{x}",
            f"v_exp_f32 v{t}, v{t}",
            f"v_add_f32 v{t}, 1.0, v{t}",
            f"v_rcp_f32 v{t}, v{t}",
            f"v_mul_f32 v{x}, v{x}, v{t}"]


def emit_parallel(a, chains):
    n = max(len(c) for c in chains)
    for i in range(n):
        for c in chains:
            if i < len(c):
                a(c[i])


class Spatial(Gemm):
    name = "sp"
    NT, KS, S, P2, FA, FB = 32, 2, 3, 12, 4, 8
    STG = 49152
    loopreg = sLOOP
    VDA, VDB, VA, VB, FR = 8, 9, 20, 24, (64, 112)

    def fa(self, p, f): return self.FR[p] + 4 * f
    def fb(self, p, f): return self.FR[p] + 16 + 4 * f
    def accn(self, x, y): return (x * 8 + y) * 4
    def acc(self, x, y): return f"a[{self.accn(x,y)}:{self.accn(x,y)+3}]"

    def dma_a(self, stage, tight=False):
        g = [f"s_add_u32 m0, s{sLW}, {stage*self.STG}"]
        if tight: g.append("s_nop 0")
        for i in range(4):
            g.append(f"buffer_load_dwordx4 v{self.VDA}, s[{SA}:{SA+3}], s{sOFFA} offen offset:{1024*i} sc1 lds")
        g.append(f"s_add_u32 s{sOFFA}, s{sOFFA}, 16384")
        return g

    def dma_b(self, stage, tight=False):
        g = []
        for h in range(2):
            g.append(f"s_add_u32 m0, s{sSTEPA}, {stage*self.STG + 16384 + 4096*h}")
            if tight or h == 0: g.append("s_nop 0")
            for i in range(4):
                g.append(f"buffer_load_dwordx4 v{self.VDB+4*h+i}, s[{SB}:{SB+3}], s{sOFFB} offen offset:{1024*i} lds")
        g.append(f"s_add_u32 s{sOFFB}, s{sOFFB}, 128")
        return g

    def dma_tile(self, stage, tight=False):
        b = self.dma_b(stage, tight)
        if not tight:
            b = [x for x in b if x != "s_nop 0"]
        return self.dma_a(stage, tight) + b

    def reads(self, stage, sub, p):
        hi = 1 if stage == 2 else 0
        so = self.STG if stage == 1 else 0
        r = []
        for f in range(8):
            r.append(f"ds_read_b128 v[{self.fb(p,f)}:{self.fb(p,f)+3}], v{self.VB+2*hi+sub} offset:{so + f*2048}")
            if f < 4:
                for u in range(2):
                    r.append(f"ds_read_b64_tr_b16 v[{self.fa(p,f)+2*u}:{self.fa(p,f)+2*u+1}], v{self.VA+2*hi+(f&1)} offset:{so + (f>>1)*4096 + sub*2048 + u*256}")
        return r

    def setup(self, a):
        a(f"v_lshlrev_b32 v{self.VDA}, 4, v1")
        a(f"s_lshl_b32 s{sT0}, s{sWAVE}, 6")
        a("v_lshrrev_b32 v5, 3, v1")
        a(f"v_add_u32 v5, s{sT0}, v5")
        a("v_lshlrev_b32 v5, 12, v5")
        a("v_and_b32 v6, 7, v1")
        for i in range(8):
            a(f"v_add_u32 v7, {4*(i&1)}, v2")
            a("v_xor_b32 v7, v7, v6")
            a("v_lshl_add_u32 v7, v7, 4, v5")
            a(f"v_add_u32 v{self.VDB+i}, {8*i*4096 - (i%4)*1024}, v7")
        a(f"s_lshl_b32 s{sSTEPA}, s{sWAVE}, 13")
        a("v_lshl_add_u32 v5, v2, 3, v3")
        a("v_lshlrev_b32 v5, 6, v5")
        a("v_and_b32 v6, 1, v4")
        a("v_lshl_add_u32 v5, v6, 3, v5")
        a(f"s_lshl_b32 s{sT0}, s{sWA}, 13")
        a(f"v_add_u32 v5, s{sT0}, v5")
        a("v_and_b32 v6, 1, v2")
        a("v_lshlrev_b32 v6, 1, v6")
        a("v_lshrrev_b32 v7, 1, v4")
        for u2 in range(2):
            a(f"v_add_u32 v17, {2*u2}, v7")
            a("v_xor_b32 v17, v17, v6")
            a(f"v_lshl_add_u32 v{self.VA+u2}, v17, 4, v5")
            a(f"v_add_u32 v{self.VA+2+u2}, {2*self.STG}, v{self.VA+u2}")
        a("v_and_b32 v6, 15, v1")
        a(f"s_lshl_b32 s{sT0}, s{sWB}, 14")
        a(f"s_add_u32 s{sT0}, s{sT0}, 16384")
        a("v_lshlrev_b32 v5, 7, v6")
        a(f"v_add_u32 v5, s{sT0}, v5")
        a("v_lshrrev_b32 v6, 1, v6")
        for sub in range(2):
            a(f"v_add_u32 v7, {4*sub}, v2")
            a("v_xor_b32 v7, v7, v6")
            a(f"v_lshl_add_u32 v{self.VB+sub}, v7, 4, v5")
            a(f"v_add_u32 v{self.VB+2+sub}, {2*self.STG}, v{self.VB+sub}")


def signal(a, flag_idx_sgpr, flag_base):
    a("s_waitcnt vmcnt(0)")
    a("s_barrier")
    skip = a.newlabel("sig")
    a(f"s_cmp_lg_u32 s{sWAVE}, 0")
    a(f"s_cbranch_scc1 {skip}")
    a(f"s_add_u32 s{sT0}, s{flag_idx_sgpr}, {flag_base}")
    a(f"s_lshl_b32 s{sT0}, s{sT0}, 8")
    a("s_mov_b64 exec, 1")
    a("v_mov_b32 v5, 0")
    a("v_mov_b32 v6, 1")
    a(f"buffer_atomic_add v6, v5, s[{SD}:{SD+3}], s{sT0} offen sc1")
    a("s_mov_b64 exec, -1")
    a.label(skip)


def wait_flag(a, flag_idx_sgpr, flag_base, count):
    skip = a.newlabel("wf")
    loop = a.newlabel("poll")
    a(f"s_cmp_lg_u32 s{sWAVE}, 0")
    a(f"s_cbranch_scc1 {skip}")
    a(f"s_add_u32 s{sT0}, s{flag_idx_sgpr}, {flag_base}")
    a(f"s_lshl_b32 s{sT0}, s{sT0}, 8")
    a("v_mov_b32 v5, 0")
    a.label(loop)
    a(f"buffer_load_dword v6, v5, s[{SD}:{SD+3}], s{sT0} offen sc1")
    a("s_waitcnt vmcnt(0)")
    a(f"v_readfirstlane_b32 s{sT2}, v6")
    a(f"s_cmp_ge_u32 s{sT2}, {count}")
    a(f"s_cbranch_scc1 {skip}")
    a("s_sleep 2")
    a(f"s_branch {loop}")
    a.label(skip)
    a("s_barrier")


def gen_gmlp(a, cfg, P1):
    SP = Spatial()
    Z = 64
    Z1 = 192
    ST = 40
    vST = 58
    BV = 28
    TAB = 147456
    sB = 35
    z2r = lambda f, fb: Z + (fb * 4 + f) * 4
    make_srd(a, SB, 46, 2048 * 2048 * 2)
    make_srd(a, SA, sWS, 7 * MB, add=WS_Z2)
    make_srd(a, SD, sWS, 32 * 1024, add=WS_FLAG)
    SP.setup(a)
    a(f"s_lshl_b32 s{sOFFB}, s{sRB}, 20")
    a(f"s_lshl_b32 s{sOFFA}, s{sJ}, 19")
    a(f"s_add_u32 s{sOFFA}, s{sOFFA}, s{sLW}")
    a("s_barrier")
    for t in range(3):
        for ins in SP.dma_b(t, tight=True):
            a(ins)
    make_srd(a, SC, 48, 4096)
    a("v_and_b32 v6, 15, v1")
    a("v_lshlrev_b32 v5, 1, v6")
    a(f"s_lshl_b32 s{sT0}, s{sRB}, 9")
    a(f"s_lshl_b32 s{sT1}, s{sWB}, 8")
    a(f"s_add_u32 s{sT0}, s{sT0}, s{sT1}")
    for fb in range(8):
        a(f"buffer_load_ushort v{BV+fb}, v5, s[{SC}:{SC+3}], s{sT0} offen offset:{32*fb}")
    c = -2.0 * math.sqrt(2.0 / math.pi) * math.log2(math.e)
    a(f"v_mov_b32 v59, {f2u(c):#x}")
    a(f"s_mov_b32 s53, {f2u(c * 0.044715):#x}")
    for fb in range(8):
        for f in range(4):
            for j in range(4):
                a(f"v_accvgpr_read_b32 v{z2r(f,fb)+j}, a{P1.accn(4+f, fb)+j}")
            emit_parallel(a, [gelu_ops(z2r(f, fb) + j, 60 + j) for j in range(4)])
            for j in range(4):
                x = z2r(f, fb) + j
                if f == 0 and j == 0:
                    a(f"v_mov_b32 v{ST+fb}, v{x}")
                    a(f"v_mul_f32 v{ST+8+fb}, v{x}, v{x}")
                else:
                    a(f"v_add_f32 v{ST+fb}, v{ST+fb}, v{x}")
                    a(f"v_fmac_f32 v{ST+8+fb}, v{x}, v{x}")
    a("s_nop 1")
    for m in range(4):
        b = ST + 4 * m
        a(f"v_permlane16_swap_b32 v{b}, v{b+1}")
        a(f"v_permlane16_swap_b32 v{b+2}, v{b+3}")
    a("s_nop 1")
    for m in range(4):
        b = ST + 4 * m
        a(f"v_add_f32 v{b}, v{b}, v{b+1}")
        a(f"v_add_f32 v{b+2}, v{b+2}, v{b+3}")
    a("s_nop 1")
    for m in range(4):
        b = ST + 4 * m
        a(f"v_permlane32_swap_b32 v{b}, v{b+2}")
    a("s_nop 1")
    a(f"v_add_f32 v60, v{ST}, v{ST+2}")
    a(f"v_add_f32 v61, v{ST+8}, v{ST+10}")
    a(f"v_add_f32 v62, v{ST+4}, v{ST+6}")
    a(f"v_add_f32 v63, v{ST+12}, v{ST+14}")
    a(f"s_lshl_b32 s{sT0}, s{sWA}, 11")
    a(f"s_lshl_b32 s{sT1}, s{sWB}, 10")
    a(f"s_add_u32 s{sT0}, s{sT0}, s{sT1}")
    a(f"s_add_u32 s{sT0}, s{sT0}, {TAB}")
    a("v_lshlrev_b32 v5, 3, v1")
    a(f"v_add_u32 v5, s{sT0}, v5")
    a("ds_write_b64 v5, v[60:61]")
    a("ds_write_b64 v5, v[62:63] offset:512")
    a("v_lshlrev_b32 v56, 3, v0")
    a(f"v_add_u32 v57, {TAB}, v56")
    a("s_waitcnt lgkmcnt(0)")
    a("s_barrier")
    a("ds_read_b64 v[60:61], v57")
    a("ds_read_b64 v[62:63], v57 offset:2048")
    make_srd(a, SC, sWS, 8 * 14 * 2048, add=WS_STAT)
    a(f"s_mul_i32 s{sB}, s{sRB}, {14*2048}")
    a(f"s_lshl_b32 s{sT0}, s{sJ}, 11")
    a(f"s_add_u32 s{sT0}, s{sT0}, s{sB}")
    a("s_waitcnt lgkmcnt(0)")
    a("v_add_f32 v60, v60, v62")
    a("v_add_f32 v61, v61, v63")
    a(f"buffer_store_dwordx2 v[60:61], v56, s[{SC}:{SC+3}], s{sT0} offen sc1")
    signal(a, sRB, 0)
    diag_mark(a, cfg, sDIAG + 12 + 4 * 2)
    for fb in range(8):
        for f in range(4):
            tb = 36 + 4 * ((fb * 4 + f) & 1)
            for j in range(4):
                a(f"v_accvgpr_read_b32 v{tb+j}, a{P1.accn(f, fb)+j}")
            emit_parallel(a, [gelu_ops(tb + j, 60 + j) for j in range(4)])
            z = Z1 + (fb * 4 + f) * 2
            a(f"v_cvt_pk_bf16_f32 v{z}, v{tb}, v{tb+1}")
            a(f"v_cvt_pk_bf16_f32 v{z+1}, v{tb+2}, v{tb+3}")
    for fb in range(8):
        a(f"v_lshlrev_b32 v{BV+fb}, 16, v{BV+fb}")
    wait_flag(a, sRB, 0, 14)
    gregs = [36 + 2 * jj for jj in range(10)] + [60, 62, 18, 6]
    for jj in range(14):
        a(f"s_add_u32 s{sT0}, s{sB}, {jj*2048}")
        d = gregs[jj]
        a(f"buffer_load_dwordx2 v[{d}:{d+1}], v56, s[{SC}:{SC+3}], s{sT0} offen sc1")
    regs = gregs
    a("s_waitcnt vmcnt(0)")
    for r in regs[1:]:
        a(f"v_add_f32 v36, v36, v{r}")
        a(f"v_add_f32 v37, v37, v{r+1}")
    a(f"v_mul_f32 v36, {f2u(1.0/1792):#x}, v36")
    a(f"v_mul_f32 v37, {f2u(1.0/1792):#x}, v37")
    a("v_fma_f32 v37, -v36, v36, v37")
    a("v_max_f32 v37, 0, v37")
    round_bf16(a, 36)
    round_bf16(a, 37)
    a("v_add_f32 v37, 0x3727c5ac, v37")
    round_bf16(a, 37)
    a("v_sqrt_f32 v37, v37")
    a("s_nop 0")
    round_bf16(a, 37)
    a("v_rcp_f32 v37, v37")
    a("s_nop 0")
    a("v_mul_f32 v36, v36, v37")
    a("v_sub_f32 v36, 0, v36")
    a("ds_write_b64 v57, v[36:37] offset:4096")
    a("v_and_b32 v6, 15, v1")
    a(f"s_lshl_b32 s{sT0}, s{sWB}, 10")
    a(f"s_add_u32 s{sT0}, s{sT0}, {TAB+4096}")
    a("v_lshlrev_b32 v5, 3, v6")
    a(f"v_add_u32 v5, s{sT0}, v5")
    a("s_waitcnt lgkmcnt(0)")
    a("s_barrier")
    for fb in range(8):
        a(f"ds_read_b64 v[{ST+2*fb}:{ST+2*fb+1}], v5 offset:{128*fb}")
    emit_sigma(a, 7, 2, 5)
    a(f"v_lshl_add_u32 v{vST}, v7, 4, v6")
    a(f"v_lshlrev_b32 v{vST}, 4, v{vST}")
    a("v_bfe_u32 v5, v1, 3, 1")
    a("v_lshlrev_b32 v5, 1, v5")
    a("v_xor_b32 v7, v7, v5")
    a("v_lshlrev_b32 v7, 4, v7")
    a("v_lshl_add_u32 v7, v6, 6, v7")
    a(f"s_lshl_b32 s{sB}, s{sJ}, 19")
    a(f"s_lshl_b32 s{sT0}, s{sRB}, 16")
    a(f"s_add_u32 s{sB}, s{sB}, s{sT0}")
    a(f"s_lshl_b32 s{sT0}, s{sWB}, 15")
    a(f"s_add_u32 s{sB}, s{sB}, s{sT0}")
    a(f"s_lshl_b32 s{sT0}, s{sWA}, 13")
    a(f"s_add_u32 s{sB}, s{sB}, s{sT0}")
    a("s_waitcnt lgkmcnt(0)")
    k = 0
    for fb in range(8):
        for pp in range(2):
            tb = 36 if (k & 1) == 0 else 60
            k += 1
            for f in (2 * pp, 2 * pp + 1):
                for j in range(4):
                    x = z2r(f, fb) + j
                    a(f"v_fma_f32 v{x}, v{x}, v{ST+2*fb+1}, v{ST+2*fb}")
            x0, x1 = z2r(2 * pp, fb), z2r(2 * pp + 1, fb)
            a(f"v_cvt_pk_bf16_f32 v{tb}, v{x0}, v{x0+1}")
            a(f"v_cvt_pk_bf16_f32 v{tb+1}, v{x0+2}, v{x0+3}")
            a(f"v_cvt_pk_bf16_f32 v{tb+2}, v{x1}, v{x1+1}")
            a(f"v_cvt_pk_bf16_f32 v{tb+3}, v{x1+2}, v{x1+3}")
            a(f"s_add_u32 s{sT0}, s{sB}, {(fb>>2)*16384 + pp*4096}")
            a(f"v_permlane16_swap_b32 v{tb}, v{tb+2}")
            a(f"v_permlane16_swap_b32 v{tb+1}, v{tb+3}")
            a(f"buffer_store_dwordx4 v[{tb}:{tb+3}], v7, s[{SA}:{SA+3}], s{sT0} offen offset:{(fb&3)*1024} sc1")
    signal(a, sJ, 8)
    diag_mark(a, cfg, sDIAG + 12 + 4 * 3)
    wait_flag(a, sJ, 8, 8)
    diag_mark(a, cfg, sDIAG + 12 + 4 * 4)
    for t in range(3):
        for ins in SP.dma_a(t, tight=True):
            a(ins)
    a("s_waitcnt vmcnt(8)")
    a("s_barrier")
    for r in SP.reads(0, 0, 0):
        a(r)
    SP.first_wait = 4
    SP.loop(a)
    diag_mark(a, cfg, sDIAG + 12 + 4 * 5)
    make_srd(a, SC, sWS, 7 * MB, add=WS_U)
    a(f"s_lshl_b32 s{sB}, s{sJ}, 2")
    a(f"s_lshl_b32 s{sT0}, s{sWA}, 1")
    a(f"s_add_u32 s{sB}, s{sB}, s{sT0}")
    a(f"s_lshl_b32 s{sB}, s{sB}, 7")
    a(f"s_lshl_b32 s{sT0}, s{sRB}, 4")
    a(f"s_add_u32 s{sB}, s{sB}, s{sT0}")
    a(f"s_lshl_b32 s{sT0}, s{sWB}, 3")
    a(f"s_add_u32 s{sB}, s{sB}, s{sT0}")
    a(f"s_lshl_b32 s{sB}, s{sB}, 10")
    a("s_nop 7")
    k = 0
    for fb in range(8):
        for pp in range(2):
            tb = 64 + 24 * (k & 1); k += 1
            for h in range(2):
                f = 2 * pp + h
                z = Z1 + (fb * 4 + f) * 2
                for j in range(4):
                    a(f"v_accvgpr_read_b32 v{tb+4*h+j}, a{SP.accn(f, fb)+j}")
                a(f"v_lshlrev_b32 v{tb+8+4*h}, 16, v{z}")
                a(f"v_and_b32 v{tb+8+4*h+1}, 0xffff0000, v{z}")
                a(f"v_lshlrev_b32 v{tb+8+4*h+2}, 16, v{z+1}")
                a(f"v_and_b32 v{tb+8+4*h+3}, 0xffff0000, v{z+1}")
            for j in range(8):
                a(f"v_add_f32 v{tb+j}, v{BV+fb}, v{tb+j}")
            for j in range(8):
                a(f"v_mul_f32 v{tb+j}, v{tb+j}, v{tb+8+j}")
            for j in range(4):
                a(f"v_cvt_pk_bf16_f32 v{tb+16+j}, v{tb+2*j}, v{tb+2*j+1}")
            a(f"s_add_u32 s{sT0}, s{sB}, {pp*131072 + (fb>>2)*4096}")
            a(f"v_permlane16_swap_b32 v{tb+16}, v{tb+18}")
            a(f"v_permlane16_swap_b32 v{tb+17}, v{tb+19}")
            a(f"buffer_store_dwordx4 v[{tb+16}:{tb+19}], v{vST}, s[{SC}:{SC+3}], s{sT0} offen offset:{(fb&3)*1024}")


def gen_k12(a, cfg):
    name = "mid_kernel"
    P1 = Phase1()
    kernel_header(a, name)
    a("s_cmp_lt_u32 s2, 240")
    a("s_cbranch_scc1 L_k12_start")
    a("s_endpgm")
    a.label("L_k12_start")
    a(f"s_load_dwordx2 s[40:41], s[0:1], {ARG['wq']}")
    a(f"s_load_dwordx4 s[44:47], s[0:1], {ARG['w_in']}")
    a(f"s_load_dwordx2 s[{sWS}:{sWS+1}], s[0:1], {ARG['ws']}")
    a(f"s_load_dwordx4 s[36:39], s[0:1], {ARG['k']}")
    a(f"s_load_dwordx2 s[48:49], s[0:1], {ARG['b_sp']}")
    diag_start(a, cfg, sDIAG)
    a("v_lshrrev_b32 v5, 6, v0")
    lane_fields(a)
    a(f"v_readfirstlane_b32 s{sWAVE}, v5")
    a("s_and_b32 s50, s2, 1")
    a("s_bfe_u32 s51, s2, 0x20001")
    a("s_lshr_b32 s52, s2, 3")
    a(f"s_and_b32 s{sWA}, s{sWAVE}, 1")
    a(f"s_lshr_b32 s{sWB}, s{sWAVE}, 1")
    a(f"s_lshl_b32 s{sLW}, s{sWAVE}, 12")
    a("s_cmp_ge_u32 s52, 16")
    a("s_cbranch_scc1 L_k12_gm")
    a(f"s_and_b32 s{sRB}, s52, 3")
    a(f"s_lshr_b32 s{sJ}, s52, 2")
    a("s_lshl_b32 s51, s51, 2")
    a(f"s_add_u32 s{sJ}, s{sJ}, s51")
    a(f"s_lshl_b32 s{sOFFA}, s{sJ}, 9")
    a("s_mov_b32 s53, 8192")
    a("s_mov_b32 s54, 128")
    a("s_mov_b32 s55, 256")
    a("s_waitcnt lgkmcnt(0)")
    make_srd(a, SA, 40, 1024 * 4096 * 2)
    a("s_branch L_k12_go")
    a.label("L_k12_gm")
    a("s_mul_i32 s51, s51, 14")
    a("s_add_u32 s51, s51, s52")
    a("s_sub_u32 s51, s51, 16")
    a(f"s_and_b32 s{sRB}, s51, 3")
    a(f"s_lshr_b32 s{sJ}, s51, 2")
    a(f"s_lshl_b32 s{sOFFA}, s{sJ}, 8")
    a("s_mov_b32 s53, 7168")
    a("s_mov_b32 s54, 3584")
    a("s_mov_b32 s55, 128")
    a("s_waitcnt lgkmcnt(0)")
    make_srd(a, SA, 44, 1024 * 3584 * 2)
    a.label("L_k12_go")
    a("s_lshl_b32 s50, s50, 2")
    a(f"s_add_u32 s{sRB}, s{sRB}, s50")
    a(f"s_lshl_b32 s{sSTEPA}, s53, 5")
    make_srd(a, SB, sWS, 4 * MB, add=WS_XN)
    a(f"s_lshl_b32 s{sOFFB}, s{sRB}, 14")
    a(f"s_add_u32 s{sOFFB}, s{sOFFB}, s{sLW}")
    P1.setup_dma(a, 53, 54, 55)
    P1.prologue_dma(a)
    P1.setup_reads(a)
    P1.first_reads(a)
    diag_mark(a, cfg, sDIAG + 12)
    P1.loop(a)
    diag_mark(a, cfg, sDIAG + 12 + 4)
    a("s_cmp_ge_u32 s52, 16")
    a("s_cbranch_scc1 L_k12_gm2")
    gen_attention(a, cfg, P1)
    a("s_branch L_k12_fin")
    a.label("L_k12_gm2")
    gen_gmlp(a, cfg, P1)
    a.label("L_k12_fin")
    diag_end(a, cfg, sDIAG, 1, sWS, sWAVE, nmarks=6)
    a.label("L_k12_end")
    a("s_endpgm")
    return (name, 240, 256, 160 * 1024, kernel_desc(name, 512, 102, 256))


class Final0(Gemm):
    KS, S, P2, FA, FB = 4, 3, 12, 2, 4
    STG = 49152
    loopreg = sLOOP
    VDA, VDB, VA, VB, FR = 8, 12, 16, 20, (32, 56)

    def __init__(self, name, NT, accbase):
        self.name, self.NT, self.accbase = name, NT, accbase

    def fa(self, p, f): return self.FR[p] + 4 * f
    def fb(self, p, f): return self.FR[p] + 8 + 4 * f
    def accn(self, x, y): return self.accbase + (x * 4 + y) * 4
    def acc(self, x, y): return f"a[{self.accn(x,y)}:{self.accn(x,y)+3}]"

    def dma_tile(self, stage, tight=False):
        g = [f"s_add_u32 m0, s{sLW}, {stage*self.STG}"]
        if tight: g.append("s_nop 0")
        for i in range(4):
            g.append(f"buffer_load_dwordx4 v{self.VDA+i}, s[{SA}:{SA+3}], s{sOFFA} offen offset:{1024*i} lds")
        g.append(f"s_add_u32 m0, s{sSTEPA}, {stage*self.STG+16384}")
        g.append(f"s_add_u32 s{sOFFA}, s{sOFFA}, {128*2048}")
        for i in range(4):
            g.append(f"buffer_load_dwordx4 v{self.VDB}, s[{SB}:{SB+3}], s{sOFFB} offen offset:{1024*i} lds")
        g.append(f"s_add_u32 m0, s{sSTEPA}, {stage*self.STG+16384+4096}")
        if tight: g.append("s_nop 0")
        for i in range(4):
            g.append(f"buffer_load_dwordx4 v{self.VDB+1}, s[{SB}:{SB+3}], s{sOFFB} offen offset:{1024*i} lds")
        g.append(f"s_add_u32 s{sOFFB}, s{sOFFB}, {4*131072}")
        return g

    def reads(self, stage, sub, p):
        hi = 1 if stage == 2 else 0
        so = self.STG if stage == 1 else 0
        r = []
        for f in range(4):
            r.append(f"ds_read_b128 v[{self.fb(p,f)}:{self.fb(p,f)+3}], v{self.VB+stage} offset:{sub*8192 + f*1024}")
            if f < 2:
                for u in range(2):
                    r.append(f"ds_read_b64_tr_b16 v[{self.fa(p,f)+2*u}:{self.fa(p,f)+2*u+1}], v{self.VA+2*hi+f} offset:{so + sub*4096 + u*512}")
        return r

    def setup(self, a):
        a(f"s_lshl_b32 s{sT0}, s{sWAVE}, 5")
        a("v_lshrrev_b32 v5, 3, v1")
        a(f"v_add_u32 v5, s{sT0}, v5")
        a("v_lshlrev_b32 v5, 11, v5")
        a("v_and_b32 v6, 7, v1")
        a("v_and_b32 v7, 1, v2")
        for i in range(4):
            a(f"v_add_u32 v14, {2*(i&1)}, v7")
            a("v_lshlrev_b32 v14, 1, v14")
            a("v_xor_b32 v14, v14, v6")
            a("v_lshl_add_u32 v14, v14, 4, v5")
            a(f"v_add_u32 v{self.VDA+i}, {8*i*2048 - i*1024}, v14")
        a(f"v_lshlrev_b32 v{self.VDB}, 4, v1")
        a(f"v_add_u32 v{self.VDB+1}, 4096, v{self.VDB}")
        a(f"s_lshl_b32 s{sSTEPA}, s{sWAVE}, 13")
        a("v_lshl_add_u32 v5, v2, 3, v3")
        a("v_lshlrev_b32 v5, 7, v5")
        a("v_and_b32 v6, 1, v4")
        a("v_lshl_add_u32 v5, v6, 3, v5")
        a("v_lshrrev_b32 v6, 1, v4")
        a("v_lshl_add_u32 v5, v6, 4, v5")
        a("v_and_b32 v6, 1, v2")
        a("v_lshlrev_b32 v6, 1, v6")
        a("v_lshrrev_b32 v7, 1, v3")
        a("v_or_b32 v6, v6, v7")
        a(f"s_lshl_b32 s{sT0}, s{sWA}, 1")
        for f in range(2):
            a(f"s_add_u32 s{sT1}, s{sT0}, {f}")
            a(f"v_xor_b32 v7, s{sT1}, v6")
            a(f"v_lshl_add_u32 v{self.VA+f}, v7, 5, v5")
            a(f"v_add_u32 v{self.VA+2+f}, {2*self.STG}, v{self.VA+f}")
        a(f"s_lshl_b32 s{sT0}, s{sWB}, 12")
        a(f"s_add_u32 s{sT0}, s{sT0}, 16384")
        a(f"v_lshlrev_b32 v{self.VB}, 4, v1")
        a(f"v_add_u32 v{self.VB}, s{sT0}, v{self.VB}")
        a(f"v_add_u32 v{self.VB+1}, {self.STG}, v{self.VB}")
        a(f"v_add_u32 v{self.VB+2}, {2*self.STG}, v{self.VB}")


def gen_k3(a, cfg):
    name = "fin_kernel"
    G1, G2 = Final0("f1", 32, 0), Final0("f2", 14, 32)
    kernel_header(a, name)
    a("s_cmp_lt_u32 s2, 256")
    a("s_cbranch_scc1 L_k3_start")
    a("s_endpgm")
    a.label("L_k3_start")
    a(f"s_load_dwordx2 s[40:41], s[0:1], {ARG['wo']}")
    a(f"s_load_dwordx4 s[44:47], s[0:1], {ARG['w_out']}")
    a(f"s_load_dwordx2 s[{sWS}:{sWS+1}], s[0:1], {ARG['ws']}")
    a(f"s_load_dwordx2 s[36:37], s[0:1], {ARG['x']}")
    diag_start(a, cfg, sDIAG)
    a("v_lshrrev_b32 v5, 6, v0")
    lane_fields(a)
    a(f"v_readfirstlane_b32 s{sWAVE}, v5")
    a("s_and_b32 s50, s2, 3")
    a("s_bfe_u32 s51, s2, 0x10002")
    a("s_lshr_b32 s52, s2, 3")
    a(f"s_and_b32 s{sRB}, s52, 3")
    a("s_lshl_b32 s50, s50, 2")
    a(f"s_add_u32 s{sRB}, s{sRB}, s50")
    a(f"s_lshr_b32 s{sJ}, s52, 2")
    a("s_lshl_b32 s51, s51, 3")
    a(f"s_add_u32 s{sJ}, s{sJ}, s51")
    a(f"s_and_b32 s{sWA}, s{sWAVE}, 1")
    a(f"s_lshr_b32 s{sWB}, s{sWAVE}, 1")
    a(f"s_lshl_b32 s{sLW}, s{sWAVE}, 12")
    a("s_waitcnt lgkmcnt(0)")
    make_srd(a, SA, 40, 4096 * 1024 * 2)
    make_srd(a, SB, sWS, 16 * MB, add=WS_O)
    a(f"s_lshl_b32 s{sOFFA}, s{sJ}, 7")
    a(f"s_lshl_b32 s53, s{sWAVE}, 17")
    a(f"s_lshl_b32 s{sT0}, s{sRB}, 13")
    a(f"s_add_u32 s53, s53, s{sT0}")
    a(f"s_mov_b32 s{sOFFB}, s53")
    G1.setup(a)
    G1.prologue_dma(a)
    G1.first_reads(a)
    diag_mark(a, cfg, sDIAG + 12)
    G1.loop(a)
    diag_mark(a, cfg, sDIAG + 12 + 4)
    make_srd(a, SA, 44, 1792 * 1024 * 2)
    make_srd(a, SB, sWS, 7 * MB, add=WS_U)
    a(f"s_lshl_b32 s{sOFFA}, s{sJ}, 7")
    a(f"s_mov_b32 s{sOFFB}, s53")
    a("s_barrier")
    G2.prologue_dma(a)
    make_srd(a, SC, 36, 4 * MB)
    make_srd(a, SD, 46, 4 * MB)
    emit_sigma(a, 7, 2, 5)
    a("v_and_b32 v6, 15, v1")
    a("v_lshlrev_b32 v24, 11, v6")
    a("v_lshl_add_u32 v24, v7, 4, v24")
    a(f"s_lshl_b32 s54, s{sRB}, 18")
    a(f"s_lshl_b32 s{sT0}, s{sWB}, 17")
    a(f"s_add_u32 s54, s54, s{sT0}")
    a(f"s_lshl_b32 s{sT0}, s{sJ}, 7")
    a(f"s_add_u32 s54, s54, s{sT0}")
    a(f"s_lshl_b32 s{sT0}, s{sWA}, 6")
    a(f"s_add_u32 s54, s54, s{sT0}")
    XR = 80
    for fb in range(4):
        a(f"s_add_u32 s{sT0}, s54, {fb*32768}")
        a(f"buffer_load_dwordx4 v[{XR+4*fb}:{XR+4*fb+3}], v24, s[{SC}:{SC+3}], s{sT0} offen")
    G2.first_reads(a, outstanding_after=4)
    G2.first_wait = 12 + 4
    G2.loop(a)
    diag_mark(a, cfg, sDIAG + 12 + 8)
    a(f"s_mov_b32 s53, {f2u(-math.log2(math.e)):#x}")
    a("s_nop 7")
    a("s_waitcnt vmcnt(0)")
    for fb in range(4):
        tb = 96 + 32 * (fb & 1)
        for h in range(2):
            for j in range(4):
                a(f"v_accvgpr_read_b32 v{tb+4*h+j}, a{G2.accn(h, fb)+j}")
                a(f"v_accvgpr_read_b32 v{tb+8+4*h+j}, a{G1.accn(h, fb)+j}")
        emit_parallel(a, [[f"v_mul_f32 v{tb+16+j}, s53, v{tb+j}", f"v_exp_f32 v{tb+16+j}, v{tb+16+j}", f"v_add_f32 v{tb+16+j}, 1.0, v{tb+16+j}",
                           f"v_rcp_f32 v{tb+16+j}, v{tb+16+j}", f"v_mul_f32 v{tb+j}, v{tb+j}, v{tb+8+j}", f"v_mul_f32 v{tb+j}, v{tb+j}, v{tb+16+j}"] for j in range(8)])
        for j in range(4):
            a(f"v_cvt_pk_bf16_f32 v{tb+24+j}, v{tb+2*j}, v{tb+2*j+1}")
        a(f"s_add_u32 s{sT0}, s54, {fb*32768}")
        a(f"v_permlane16_swap_b32 v{tb+24}, v{tb+26}")
        a(f"v_permlane16_swap_b32 v{tb+25}, v{tb+27}")
        for j in range(4):
            a(f"v_lshlrev_b32 v{tb+2*j}, 16, v{tb+24+j}")
            a(f"v_and_b32 v{tb+2*j+1}, 0xffff0000, v{tb+24+j}")
            a(f"v_lshlrev_b32 v{tb+8+2*j}, 16, v{XR+4*fb+j}")
            a(f"v_and_b32 v{tb+8+2*j+1}, 0xffff0000, v{XR+4*fb+j}")
        for j in range(8):
            a(f"v_add_f32 v{tb+j}, v{tb+j}, v{tb+8+j}")
        for j in range(4):
            a(f"v_cvt_pk_bf16_f32 v{tb+28+j}, v{tb+2*j}, v{tb+2*j+1}")
        a(f"buffer_store_dwordx4 v[{tb+28}:{tb+31}], v24, s[{SD}:{SD+3}], s{sT0} offen")
    diag_end(a, cfg, sDIAG, 2, sWS, sWAVE, nmarks=3)
    a("s_endpgm")
    return (name, 256, 256, 3 * 49152, kernel_desc(name, 160 + 64, 102, 160))


def build(cfg, kernels):
    a = Asm()
    infos = []
    for k in kernels:
        infos.append(k(a, cfg))
    hdr = "; recurrent_scan/sliding_block_cached/mixer_gmlp: generated by a Python generator script (hand-designed schedule)\n"
    for (name, grid, block, lds, desc) in infos:
        hdr += f"; @launch kernel={name} grid=({grid},1,1) block=({block},1,1) lds={lds}\n"
    hdr += '.amdgcn_target "amdgcn-amd-amdhsa--gfx950"\n'
    txt = a.text().replace("    ", " ")
    return hdr + txt + "".join(i[4] for i in infos)


if __name__ == "__main__":
    cfg = json.loads(sys.argv[2]) if len(sys.argv) > 2 else {}
    txt = build(cfg, [gen_k0, gen_k12, gen_k3])
    open(sys.argv[1], "w").write(txt)
```

```python
import sys, json, math, struct
from asmlib import *
from core import *

NAME = "recurrent_scan__sliding_block_cached__mixer_gmlp__prompt"
MB = 1 << 20
WS_XN = 0
WS_O = 4 * MB
WS_U = 20 * MB
WS_Z2 = 28 * MB
WS_STAT = 36 * MB
WS_FLAG = 37 * MB
WS_DBG = 64 * MB
WS_DIAG = 128 * MB

ARG = dict(x=0, k=8, v=16, wq=24, wo=32, bx=40, w_in=48, w_sp=56, b_sp=64, w_out=72, out=80, dbg=88, ws=96)


def f2u(x):
    return struct.unpack("<I", struct.pack("<f", x))[0]


def diag_start(a, cfg, s):
    if cfg.get("diag"):
        a(f"s_memtime s[{s}:{s+1}]")
        a(f"s_memrealtime s[{s+2}:{s+3}]")
        a("s_waitcnt lgkmcnt(0)")


def diag_mark(a, cfg, s):
    if cfg.get("diag"):
        a("s_waitcnt lgkmcnt(0)")
        a(f"s_memtime s[{s}:{s+1}]")
        a(f"s_memrealtime s[{s+2}:{s+3}]")
        a("s_waitcnt lgkmcnt(0)")


def diag_end(a, cfg, s, kidx, wsptr, swave, nmarks=0):
    if not cfg.get("diag"):
        return
    a("s_waitcnt vmcnt(0) lgkmcnt(0)")
    a(f"s_memtime s[{s+4}:{s+5}]")
    a(f"s_memrealtime s[{s+6}:{s+7}]")
    a("s_waitcnt lgkmcnt(0)")
    skip = a.newlabel("nodiag")
    a(f"s_cmp_lg_u32 s{swave}, 0")
    a(f"s_cbranch_scc1 {skip}")
    a(f"s_lshl_b32 s{s+8}, s2, 7")
    a(f"s_add_u32 s{s+8}, s{s+8}, {WS_DIAG + kidx * 65536:#x}")
    a(f"v_mov_b32 v1, s{s+8}")
    regs = [s + i for i in range(8)]
    for m in range(nmarks):
        regs += [s + 12 + 4 * m, s + 12 + 4 * m + 2]
    a("s_mov_b64 exec, 1")
    for i, r in enumerate(regs):
        a(f"v_mov_b32 v2, s{r}")
        a(f"global_store_dword v1, v2, s[{wsptr}:{wsptr+1}] offset:{4*i}")
    a(f"s_getreg_b32 s{s+8}, hwreg(HW_REG_XCC_ID)")
    a(f"v_mov_b32 v2, s{s+8}")
    a(f"global_store_dword v1, v2, s[{wsptr}:{wsptr+1}] offset:{4*31}")
    a("s_waitcnt vmcnt(0)")
    a.label(skip)


def xlane_sum_16_32(a, v, t):
    a(f"v_mov_b32 v{t}, v{v}")
    a("s_nop 1")
    a(f"v_permlane16_swap_b32 v{v}, v{t}")
    a("s_nop 1")
    a(f"v_add_f32 v{v}, v{v}, v{t}")
    a(f"v_mov_b32 v{t}, v{v}")
    a("s_nop 1")
    a(f"v_permlane32_swap_b32 v{v}, v{t}")
    a("s_nop 1")
    a(f"v_add_f32 v{v}, v{v}, v{t}")


def xlane_sum_8_16_32(a, v, t):
    a("s_nop 1")
    a(f"v_mov_b32_dpp v{t}, v{v} row_ror:8 row_mask:0xf bank_mask:0xf")
    a(f"v_add_f32 v{v}, v{v}, v{t}")
    xlane_sum_16_32(a, v, t)


def round_bf16(a, v):
    a(f"v_cvt_pk_bf16_f32 v{v}, v{v}, v{v}")
    a(f"v_and_b32 v{v}, 0xffff0000, v{v}")


def gen_k0(a, cfg):
    name = "ln_kernel"
    kernel_header(a, name)
    a("s_cmp_ge_u32 s2, 256")
    a("s_cbranch_scc1 L_k0_end")
    a(f"s_load_dwordx2 s[4:5], s[0:1], {ARG['x']}")
    a(f"s_load_dwordx2 s[6:7], s[0:1], {ARG['ws']}")
    diag_start(a, cfg, 40)
    a("v_and_b32 v1, 63, v0")
    a("v_lshrrev_b32 v2, 6, v0")
    a("v_and_b32 v3, 7, v1")
    a("v_lshrrev_b32 v4, 3, v1")
    a("s_lshl_b32 s3, s2, 3")
    a("v_add_u32 v5, s3, v3")
    a("v_lshlrev_b32 v6, 11, v5")
    a("v_lshl_add_u32 v7, v2, 5, v4")
    a("v_lshl_add_u32 v6, v7, 4, v6")
    a("v_readfirstlane_b32 s20, v2")
    a("s_waitcnt lgkmcnt(0)")
    make_srd(a, 8, 4, 2048 * 1024 * 2)
    make_srd(a, 12, 6, 2048 * 1024 * 2, add=WS_XN)
    for i in range(4):
        a(f"buffer_load_dwordx4 v[{16+4*i}:{19+4*i}], v6, s[8:11], 0 offen offset:{128*i}")
    make_srd(a, 24, 6, 32 * 1024, add=WS_FLAG)
    a("s_lshl_b32 s16, s2, 10")
    a("v_lshlrev_b32 v9, 2, v0")
    a("v_add_u32 v9, s16, v9")
    a("v_mov_b32 v10, 0")
    a("buffer_store_dword v10, v9, s[24:27], 0 offen")
    a("v_lshrrev_b32 v8, 5, v1")
    a("v_lshl_add_u32 v8, v2, 3, v8")
    a("v_lshlrev_b32 v8, 17, v8")
    a("v_lshrrev_b32 v9, 4, v5")
    a("v_lshl_add_u32 v8, v9, 10, v8")
    a("v_and_b32 v9, 3, v4")
    a("v_lshl_add_u32 v8, v9, 8, v8")
    a("v_and_b32 v9, 15, v5")
    a("v_lshl_add_u32 v8, v9, 4, v8")
    a("v_lshl_add_u32 v10, v2, 3, v3")
    a("v_lshlrev_b32 v10, 2, v10")
    a("v_lshlrev_b32 v11, 2, v3")
    X = 32
    for i in range(4):
        a(f"s_waitcnt vmcnt({4-i})")
        for j in range(4):
            r = 16 + 4 * i + j
            a(f"v_lshlrev_b32 v{X+8*i+2*j}, 16, v{r}")
            a(f"v_and_b32 v{X+8*i+2*j+1}, 0xffff0000, v{r}")
    for c in range(4):
        a(f"v_add_f32 v{12+c}, v{X+c}, v{X+4+c}")
    for j in range(2, 8):
        for c in range(4):
            a(f"v_add_f32 v{12+c}, v{12+c}, v{X+4*j+c}")
    a("v_add_f32 v12, v12, v13")
    a("v_add_f32 v14, v14, v15")
    a("v_add_f32 v12, v12, v14")
    xlane_sum_8_16_32(a, 12, 13)
    a("ds_write_b32 v10, v12")
    a("s_waitcnt lgkmcnt(0)")
    a("s_barrier")
    a("ds_read2_b32 v[12:13], v11 offset0:0 offset1:8")
    a("ds_read2_b32 v[14:15], v11 offset0:16 offset1:24")
    a("s_waitcnt lgkmcnt(0)")
    a("v_add_f32 v12, v12, v13")
    a("v_add_f32 v14, v14, v15")
    a("v_add_f32 v12, v12, v14")
    a("v_mul_f32 v16, 0x3a800000, v12")
    for c in range(4):
        a(f"v_sub_f32 v{18+c}, v{X+c}, v16")
        a(f"v_mul_f32 v{12+c}, v{18+c}, v{18+c}")
    for j in range(1, 8):
        for c in range(4):
            a(f"v_sub_f32 v{18+c}, v{X+4*j+c}, v16")
        for c in range(4):
            a(f"v_fmac_f32 v{12+c}, v{18+c}, v{18+c}")
    a("v_add_f32 v12, v12, v13")
    a("v_add_f32 v14, v14, v15")
    a("v_add_f32 v12, v12, v14")
    xlane_sum_8_16_32(a, 12, 13)
    a("ds_write_b32 v10, v12 offset:128")
    a("s_waitcnt lgkmcnt(0)")
    a("s_barrier")
    a("ds_read2_b32 v[12:13], v11 offset0:32 offset1:40")
    a("ds_read2_b32 v[14:15], v11 offset0:48 offset1:56")
    round_bf16(a, 16)
    a("s_waitcnt lgkmcnt(0)")
    a("v_add_f32 v12, v12, v13")
    a("v_add_f32 v14, v14, v15")
    a("v_add_f32 v12, v12, v14")
    a("v_mul_f32 v12, 0x3a800000, v12")
    round_bf16(a, 12)
    a("v_add_f32 v12, 0x3727c5ac, v12")
    round_bf16(a, 12)
    a("v_sqrt_f32 v12, v12")
    a("s_nop 0")
    round_bf16(a, 12)
    a("v_rcp_f32 v12, v12")
    for j in range(16):
        a(f"v_sub_f32 v{X+2*j}, v{X+2*j}, v16")
        a(f"v_sub_f32 v{X+2*j+1}, v{X+2*j+1}, v16")
        a(f"v_cvt_pk_bf16_f32 v17, v{X+2*j}, v{X+2*j+1}")
        a(f"v_lshlrev_b32 v{X+2*j}, 16, v17")
        a(f"v_and_b32 v{X+2*j+1}, 0xffff0000, v17")
        a(f"v_mul_f32 v{X+2*j}, v{X+2*j}, v12")
        a(f"v_mul_f32 v{X+2*j+1}, v{X+2*j+1}, v12")
        a(f"v_cvt_pk_bf16_f32 v{64+j}, v{X+2*j}, v{X+2*j+1}")
        if j % 4 == 3:
            i = j // 4
            a(f"s_mov_b32 s16, {i*262144}")
            a(f"buffer_store_dwordx4 v[{64+4*i}:{67+4*i}], v8, s[12:15], s16 offen")
    diag_end(a, cfg, 40, 0, 6, 20)
    a.label("L_k0_end")
    a("s_endpgm")
    return (name, 256, 256, 512, kernel_desc(name, 80, 64, 80))


SA, SB, SC, SD = 4, 8, 12, 16
sWAVE, sWA, sWB, sRB, sJ = 20, 21, 22, 23, 24
sOFFA, sOFFB, sSTEPA, sLW, sLOOP, sT0, sT1, sT2 = 26, 27, 28, 29, 30, 31, 25, 3
sWS = 32
sDIAG = 56


def lane_fields(a):
    a("v_and_b32 v1, 63, v0")
    a("v_lshrrev_b32 v2, 4, v1")
    a("v_bfe_u32 v3, v1, 2, 2")
    a("v_and_b32 v4, 3, v1")


class Phase1(Gemm):
    name = "p1"
    NT, KS, S, P2, FA, FB = 32, 1, 4, 8, 8, 8
    STG = 32768
    loopreg = sLOOP
    VDA, VDB, VA, VB, FR = 8, 12, 16, 32, (64, 128)

    def fa(self, p, f): return self.FR[p] + 4 * f
    def fb(self, p, f): return self.FR[p] + 32 + 4 * f
    def accn(self, x, y): return (x * 8 + y) * 4
    def acc(self, x, y): return f"a[{self.accn(x,y)}:{self.accn(x,y)+3}]"

    def dma_tile(self, stage, tight=False):
        g = [f"s_add_u32 m0, s{sLW}, {stage*self.STG}"]
        if tight: g.append("s_nop 0")
        for i in range(4):
            g.append(f"buffer_load_dwordx4 v{self.VDA+i}, s[{SA}:{SA+3}], s{sOFFA} offen offset:{1024*i} lds")
        g.append(f"s_add_u32 m0, s{sLW}, {stage*self.STG+16384}")
        g.append(f"s_add_u32 s{sOFFA}, s{sOFFA}, s{sSTEPA}")
        for i in range(4):
            g.append(f"buffer_load_dwordx4 v{self.VDB}, s[{SB}:{SB+3}], s{sOFFB} offen offset:{1024*i} lds")
        g.append(f"s_add_u32 s{sOFFB}, s{sOFFB}, 131072")
        return g

    def reads(self, stage, sub, p):
        hi = stage >> 1
        so = (stage & 1) * self.STG
        r = []
        for f in range(8):
            r.append(f"ds_read_b128 v[{self.fb(p,f)}:{self.fb(p,f)+3}], v{self.VB+hi} offset:{so + f*1024}")
            for u in range(2):
                r.append(f"ds_read_b64_tr_b16 v[{self.fa(p,f)+2*u}:{self.fa(p,f)+2*u+1}], v{self.VA+8*hi+f} offset:{so + u*2048}")
        return r

    def setup_dma(self, a, sRS, sC1, sC2):
        a("v_lshrrev_b32 v5, 5, v1")
        a(f"s_lshl_b32 s{sT0}, s{sWAVE}, 3")
        a(f"v_add_u32 v5, s{sT0}, v5")
        a("v_and_b32 v6, 31, v1")
        for i in range(4):
            a(f"v_add_u32 v7, {2*i}, v5")
            a("v_and_b32 v13, 3, v7")
            a("v_bfe_u32 v14, v7, 3, 1")
            a("v_lshl_add_u32 v13, v14, 2, v13")
            a("v_lshlrev_b32 v13, 1, v13")
            a("v_xor_b32 v13, v13, v6")
            a(f"v_mul_lo_u32 v7, v7, s{sRS}")
            a("v_and_b32 v14, 7, v13")
            a("v_lshl_add_u32 v7, v14, 4, v7")
            a("v_bfe_u32 v14, v13, 3, 1")
            a(f"v_mad_u32_u24 v7, v14, s{sC1}, v7")
            a("v_lshrrev_b32 v14, 4, v13")
            a(f"v_mad_u32_u24 v7, v14, s{sC2}, v7")
            a(f"v_subrev_u32 v{self.VDA+i}, {1024*i}, v7")
        a(f"v_lshlrev_b32 v{self.VDB}, 4, v1")

    def setup_reads(self, a):
        a("v_lshl_add_u32 v5, v2, 3, v3")
        a("v_lshlrev_b32 v5, 9, v5")
        a("v_lshrrev_b32 v6, 1, v4")
        a(f"s_lshl_b32 s{sT0}, s{sWA}, 4")
        a(f"v_add_u32 v6, s{sT0}, v6")
        a("v_lshl_add_u32 v5, v6, 4, v5")
        a("v_and_b32 v6, 1, v4")
        a("v_lshl_add_u32 v5, v6, 3, v5")
        a("v_and_b32 v6, 1, v2")
        a("v_lshl_add_u32 v6, v6, 2, v3")
        for f in range(8):
            a(f"v_xor_b32 v7, {f}, v6")
            a(f"v_lshl_add_u32 v{self.VA+f}, v7, 5, v5")
            a(f"v_add_u32 v{self.VA+8+f}, 0x10000, v{self.VA+f}")
        a(f"s_lshl_b32 s{sT0}, s{sWB}, 13")
        a(f"s_add_u32 s{sT0}, s{sT0}, 16384")
        a(f"v_lshlrev_b32 v{self.VB}, 4, v1")
        a(f"v_add_u32 v{self.VB}, s{sT0}, v{self.VB}")
        a(f"v_add_u32 v{self.VB+1}, 0x10000, v{self.VB}")


SIGMA_NOTE = "after permlane16_swap lane quarter qq holds 8-col chunk sigma(qq) = [0,2,1,3][qq]"


def emit_sigma(a, dst, q, t):
    a(f"v_and_b32 v{t}, 1, v{q}")
    a(f"v_lshlrev_b32 v{t}, 1, v{t}")
    a(f"v_lshrrev_b32 v{dst}, 1, v{q}")
    a(f"v_or_b32 v{dst}, v{dst}, v{t}")


class LgkmTracker:
    def __init__(self, a, lag=6):
        self.a = a; self.n = 0; self.done = -1; self.reg = {}; self.lag = lag

    def load(self, ins, regs):
        self.a(ins)
        for r in regs: self.reg[r] = self.n
        self.n += 1

    def need(self, regs):
        idx = max([self.reg.get(r, -1) for r in regs] + [-1])
        if idx > self.done:
            tgt = max(idx, self.n - 1 - self.lag)
            self.a(f"s_waitcnt lgkmcnt({min(15, self.n - 1 - tgt)})")
            self.done = tgt

    def all_done(self):
        self.done = self.n - 1


class VmTracker:
    def __init__(self):
        self.tags = []

    def issue(self, tag):
        self.tags.append(tag)

    def count_after(self, tag):
        last = max(i for i, t in enumerate(self.tags) if t == tag)
        return len(self.tags) - 1 - last


def gen_attention(a, cfg, P1):
    KD, VD, KA, VA_, ONES, LA, SB_, PB, KF, VF, T = 8, 12, 16, 24, 40, 44, 64, 128, 160, 192, 224
    sKV, sOB, sFAIL = 34, 35, 50
    vST = 60
    STG = 32768
    use_ones = cfg.get("ones", 1)
    Qr = lambda qt, p: P1.accn(2 * p, qt)
    def Or(dt, qt):
        n = dt * 4 + qt
        return P1.accn(2 * (n >> 3) + 1, n & 7)
    Sr = lambda sb, kt, qt: SB_ + 32 * sb + (kt * 4 + qt) * 4
    Pr = lambda pb, qt: PB + 16 * pb + 4 * qt
    Kf = lambda kt, p: KF + (kt * 4 + p) * 4
    Vf = lambda dt: VF + 4 * dt
    make_srd(a, SA, 36, 4 * 2048 * 128 * 2)
    make_srd(a, SB, 38, 4 * 2048 * 128 * 2)
    make_srd(a, SC, sWS, 16 * MB, add=WS_O)
    a(f"s_lshr_b32 s{sKV}, s{sJ}, 2")
    a(f"s_lshl_b32 s{sKV}, s{sKV}, 19")
    a(f"s_add_u32 s{sKV}, s{sKV}, {1536*256}")
    a(f"s_lshl_b32 s{sT0}, s{sWAVE}, 4")
    a(f"v_add_u32 v5, s{sT0}, v2")
    a("v_lshlrev_b32 v5, 8, v5")
    a("v_and_b32 v6, 15, v1")
    for i in range(4):
        a(f"v_add_u32 v7, {4*i}, v2")
        a("v_xor_b32 v61, v7, v6")
        a(f"v_lshl_add_u32 v{KD+i}, v61, 4, v5")
        a("v_and_b32 v7, 7, v7")
        a("v_lshlrev_b32 v7, 1, v7")
        a("v_xor_b32 v61, v7, v6")
        a(f"v_lshl_add_u32 v{VD+i}, v61, 4, v5")
    vm = VmTracker()

    def unit_dma(m):
        g = []
        sl = (m % 4) * STG
        if m <= 15:
            g.append((f"s_add_u32 m0, s{sLW}, {sl}", None))
            g.append((f"s_add_u32 s{sOFFA}, s{sKV}, {(m & 7) * 16384}", None))
            for i in range(4):
                g.append((f"buffer_load_dwordx4 v{KD+i}, s[{SA}:{SA+3}], s{sOFFA} offen offset:{1024*i} lds", m))
        if m >= 1:
            g.append((f"s_add_u32 m0, s{sLW}, {sl+16384}", None))
            g.append((f"s_add_u32 s{sOFFB}, s{sKV}, {((m - 1) & 7) * 16384}", None))
            for i in range(4):
                g.append((f"buffer_load_dwordx4 v{VD+i}, s[{SB}:{SB+3}], s{sOFFB} offen offset:{1024*i} lds", m))
        return g

    def emit_vm(x):
        ins, tag = x
        a(ins)
        if tag is not None:
            vm.issue(tag)

    a("s_barrier")
    for m in range(4):
        for x in unit_dma(m):
            emit_vm(x)
    emit_sigma(a, 62, 2, 63)
    a("v_and_b32 v6, 15, v1")
    for p in range(4):
        a(f"v_add_u32 v7, {4*p}, v62")
        a("v_xor_b32 v7, v7, v6")
        a("v_lshlrev_b32 v7, 4, v7")
        a(f"v_lshl_add_u32 v{KA+p}, v6, 8, v7")
        a(f"v_add_u32 v{KA+4+p}, 0x10000, v{KA+p}")
    a("v_lshl_add_u32 v5, v2, 2, v3")
    a("v_and_b32 v7, 7, v5")
    a("v_lshlrev_b32 v5, 8, v5")
    a("v_lshrrev_b32 v61, 1, v4")
    a("v_lshl_add_u32 v5, v61, 4, v5")
    a("v_and_b32 v61, 1, v4")
    a("v_lshl_add_u32 v5, v61, 3, v5")
    for dt in range(8):
        a(f"v_xor_b32 v61, {dt}, v7")
        a(f"v_lshl_add_u32 v{VA_+dt}, v61, 5, v5")
        a(f"v_add_u32 v{VA_+8+dt}, 0x10000, v{VA_+dt}")
    a(f"v_lshl_add_u32 v{vST}, v62, 4, v6")
    a(f"v_lshlrev_b32 v{vST}, 4, v{vST}")
    a(f"s_lshl_b32 s{sOB}, s{sJ}, 1")
    a(f"s_add_u32 s{sOB}, s{sOB}, s{sWA}")
    a(f"s_lshl_b32 s{sOB}, s{sOB}, 9")
    a(f"s_lshl_b32 s{sT0}, s{sRB}, 4")
    a(f"s_add_u32 s{sOB}, s{sOB}, s{sT0}")
    a(f"s_lshl_b32 s{sT0}, s{sWB}, 3")
    a(f"s_add_u32 s{sOB}, s{sOB}, s{sT0}")
    a(f"s_lshl_b32 s{sOB}, s{sOB}, 10")
    for i in range(4):
        a(f"v_mov_b32 v{ONES+i}, 0x3f803f80")
    a(f"s_mov_b64 s[{sFAIL}:{sFAIL+1}], 0")
    a(f"s_mov_b32 s{sT1}, {f2u(128 ** -0.5 * math.log2(math.e)):#x}")
    k = 0
    for qt in range(8):
        for p in range(4):
            tb = T + 16 * (k & 1); k += 1
            for j in range(4):
                a(f"v_accvgpr_read_b32 v{tb+j}, a{P1.accn(2*p, qt)+j}")
                a(f"v_accvgpr_read_b32 v{tb+4+j}, a{P1.accn(2*p+1, qt)+j}")
            for j in range(8):
                a(f"v_mul_f32 v{tb+j}, s{sT1}, v{tb+j}")
            for j in range(4):
                a(f"v_cvt_pk_bf16_f32 v{tb+8+j}, v{tb+2*j}, v{tb+2*j+1}")
            a("s_nop 0")
            a(f"v_permlane16_swap_b32 v{tb+8}, v{tb+10}")
            a(f"v_permlane16_swap_b32 v{tb+9}, v{tb+11}")
            a("s_nop 0")
            for j in range(4):
                a(f"v_accvgpr_write_b32 a{Qr(qt,p)+j}, v{tb+8+j}")
    diag_mark(a, cfg, sDIAG + 12 + 4 * 2)
    lg = LgkmTracker(a)

    def k_read(G, kt, p):
        m = G >> 1
        sl = m % 4
        return (f"ds_read_b128 v[{Kf(kt,p)}:{Kf(kt,p)+3}], v{KA+4*(sl>>1)+p} offset:{(sl&1)*STG + (G&1)*8192 + kt*4096}", list(range(Kf(kt, p), Kf(kt, p) + 4)))

    def v_read(G, dt, u):
        sl = ((G >> 1) + 1) % 4
        r = Vf(dt) + 2 * u
        return (f"ds_read_b64_tr_b16 v[{r}:{r+1}], v{VA_+8*(sl>>1)+dt} offset:{(sl&1)*STG + 16384 + (G&1)*8192 + u*4096}", [r, r + 1])

    def epilogue(h):
        a("s_nop 7")
        a("s_nop 1")
        a(f"s_mov_b32 s{sT0}, {f2u(2.0**-40):#x}")
        a(f"s_mov_b32 s{sT2}, {f2u(2.0**40):#x}")
        RL = T + 28
        for qt in range(4):
            l = LA + 4 * qt
            if not use_ones:
                xlane_sum_16_32(a, l, T)
            a(f"v_cmp_nle_f32 vcc, s{sT0}, v{l}")
            a(f"s_or_b64 s[{sFAIL}:{sFAIL+1}], s[{sFAIL}:{sFAIL+1}], vcc")
            a(f"v_cmp_nge_f32 vcc, s{sT2}, v{l}")
            a(f"s_or_b64 s[{sFAIL}:{sFAIL+1}], s[{sFAIL}:{sFAIL+1}], vcc")
            a(f"v_rcp_f32 v{RL+qt}, v{l}")
            if not use_ones:
                a(f"v_mov_b32 v{l}, 0")
                a(f"v_mov_b32 v{l+1}, 0")
        k = 0
        for p in range(4):
            a(f"s_add_u32 s{sT0}, s{sOB}, {p*131072 + 4*h*1024}")
            for qt in range(4):
                tb = T + 12 * (k & 1); k += 1
                for j in range(4):
                    a(f"v_accvgpr_read_b32 v{tb+j}, a{Or(2*p,qt)+j}")
                    a(f"v_accvgpr_read_b32 v{tb+4+j}, a{Or(2*p+1,qt)+j}")
                for j in range(8):
                    a(f"v_mul_f32 v{tb+j}, v{RL+qt}, v{tb+j}")
                for j in range(4):
                    a(f"v_cvt_pk_bf16_f32 v{tb+8+j}, v{tb+2*j}, v{tb+2*j+1}")
                a("s_nop 0")
                a(f"v_permlane16_swap_b32 v{tb+8}, v{tb+10}")
                a(f"v_permlane16_swap_b32 v{tb+9}, v{tb+11}")
                a(f"buffer_store_dwordx4 v[{tb+8}:{tb+11}], v{vST}, s[{SC}:{SC+3}], s{sT0} offen offset:{qt*1024}")
                vm.issue("st")

    if not use_ones:
        for qt in range(4):
            a(f"v_mov_b32 v{LA+4*qt}, 0")
            a(f"v_mov_b32 v{LA+4*qt+1}, 0")
    pend_dma = []
    for g in range(-3, 32):
        GA, GB, GC, GK, GV = g + 2, g + 1, g, g + 3, g + 1
        doA, doB, doC = 0 <= GA < 32, 0 <= GB < 32, 0 <= GC < 32
        doK, doV = 0 <= GK < 32, 0 <= GV < 32
        blocks = []
        for b in range(8):
            kt, p = b >> 2, b & 3
            ms = []
            if doA:
                for qt in range(4):
                    s = Sr(GA & 1, kt, qt)
                    q = Qr(4 * (GA >> 4) + qt, p)
                    c = "0" if p == 0 else f"v[{s}:{s+3}]"
                    ms.append((f"v_mfma_f32_16x16x32_bf16 v[{s}:{s+3}], v[{Kf(kt,p)}:{Kf(kt,p)+3}], a[{q}:{q+3}], {c}", list(range(Kf(kt, p), Kf(kt, p) + 4))))
            blocks.append((ms, [k_read(GK, kt, p)] if doK else []))
            ms = []
            if doC:
                for qt in range(4):
                    o = Or(b, qt)
                    pr = Pr(GC & 1, qt)
                    c = "0" if GC % 16 == 0 else f"a[{o}:{o+3}]"
                    ms.append((f"v_mfma_f32_16x16x32_bf16 a[{o}:{o+3}], v[{Vf(b)}:{Vf(b)+3}], v[{pr}:{pr+3}], {c}", list(range(Vf(b), Vf(b) + 4))))
            blocks.append((ms, [v_read(GV, b, 0), v_read(GV, b, 1)] if doV else []))
        if doC and use_ones:
            ms = []
            for qt in range(4):
                l = LA + 4 * qt
                pr = Pr(GC & 1, qt)
                c = "0" if GC % 16 == 0 else f"v[{l}:{l+3}]"
                ms.append((f"v_mfma_f32_16x16x32_bf16 v[{l}:{l+3}], v[{ONES}:{ONES+3}], v[{pr}:{pr+3}], {c}", []))
            blocks.insert(cfg.get("ones_pos", 8), (ms, []))
        valu = []
        if doB:
            sb, pb = GB & 1, GB & 1
            tiles = [(kt, qt) for kt in range(2) for qt in range(4)]
            prev = []
            for (kt, qt) in tiles:
                s = Sr(sb, kt, qt)
                ex = [f"v_exp_f32 v{s+j}, v{s+j}" for j in range(4)]
                valu.append(ex[0]); valu += prev[:1]; valu.append(ex[1]); valu += prev[1:2]
                valu.append(ex[2]); valu += prev[2:4]; valu.append(ex[3]); valu += prev[4:]
                prev = [f"v_cvt_pk_bf16_f32 v{Pr(pb,qt)+2*kt}, v{s}, v{s+1}", f"v_cvt_pk_bf16_f32 v{Pr(pb,qt)+2*kt+1}, v{s+2}, v{s+3}"]
                if not use_ones:
                    l = LA + 4 * qt + 2 * ((GB >> 4) & 1)
                    raise SystemExit("VALU row-sum variant not wired yet")
            valu.append("s_nop 0")
            valu += prev
        bar = (g % 2 != 0) and (g + 3) // 2 <= 16
        Tn = (g + 3) // 2
        nm = sum(len(b[0]) for b in blocks)
        barpos = cfg.get("att_barpos", 3) if nm >= 32 else 0
        cost = lambda ins: 2 if ins.startswith("v_exp") else 1
        vtot = sum(cost(x) for x in valu)
        mi = 0
        vi = 0
        vdone = 0
        held = []
        rq = []
        dma = pend_dma
        pend_dma = []
        for bi, (ms, rl) in enumerate(blocks):
            if bar and bi == barpos:
                a(f"s_waitcnt vmcnt({vm.count_after(Tn)}) lgkmcnt(0)")
                lg.all_done()
                a("s_barrier")
                if Tn >= 1 and Tn + 3 <= 16:
                    u = unit_dma(Tn + 3)
                    cut = len(u) // 2
                    dma = dma + u[:cut]
                    pend_dma = u[cut:]
                rq += held
                held = []
            for j, (ins, regs) in enumerate(ms):
                lg.need(regs)
                a(ins)
                mi += 1
                budget = 2
                tgt = (mi * vtot) / nm
                while vi < len(valu) and vdone + cost(valu[vi]) <= tgt + 1 and (budget >= cost(valu[vi]) or vdone + 3 < tgt):
                    budget -= cost(valu[vi]); vdone += cost(valu[vi])
                    a(valu[vi]); vi += 1
                while budget > 0 and (rq or dma):
                    if rq:
                        lg.load(*rq.pop(0))
                    else:
                        emit_vm(dma.pop(0))
                    budget -= 1
            if bar and bi < barpos:
                held += rl
            else:
                rq += rl
            if nm == 0:
                for x in rq:
                    lg.load(*x)
                rq = []
        while vi < len(valu):
            a(valu[vi]); vi += 1
        for x in rq:
            lg.load(*x)
        for x in dma:
            emit_vm(x)
        if g in (15, 31):
            epilogue(g >> 4)
            if g == 15:
                diag_mark(a, cfg, sDIAG + 12 + 4 * 3)
                lg.all_done()


def gelu_ops(x, t):
    return [f"v_mul_f32 v{t}, v{x}, v{x}",
            f"v_fma_f32 v{t}, v{t}, s53, v{59}",
            f"v_mul_f32 v{t}, v{t}, v{x}",
            f"v_exp_f32 v{t}, v{t}",
            f"v_add_f32 v{t}, 1.0, v{t}",
            f"v_rcp_f32 v{t}, v{t}",
            f"v_mul_f32 v{x}, v{x}, v{t}"]


def emit_parallel(a, chains):
    n = max(len(c) for c in chains)
    for i in range(n):
        for c in chains:
            if i < len(c):
                a(c[i])


class Spatial(Gemm):
    name = "sp"
    NT, KS, S, P2, FA, FB = 32, 2, 3, 12, 4, 8
    STG = 49152
    loopreg = sLOOP
    VDA, VDB, VA, VB, FR = 8, 9, 20, 24, (64, 112)

    def fa(self, p, f): return self.FR[p] + 4 * f
    def fb(self, p, f): return self.FR[p] + 16 + 4 * f
    def accn(self, x, y): return (x * 8 + y) * 4
    def acc(self, x, y): return f"a[{self.accn(x,y)}:{self.accn(x,y)+3}]"

    def dma_a(self, stage, tight=False):
        g = [f"s_add_u32 m0, s{sLW}, {stage*self.STG}"]
        if tight: g.append("s_nop 0")
        for i in range(4):
            g.append(f"buffer_load_dwordx4 v{self.VDA}, s[{SA}:{SA+3}], s{sOFFA} offen offset:{1024*i} sc1 lds")
        g.append(f"s_add_u32 s{sOFFA}, s{sOFFA}, 16384")
        return g

    def dma_b(self, stage, tight=False):
        g = []
        for h in range(2):
            g.append(f"s_add_u32 m0, s{sSTEPA}, {stage*self.STG + 16384 + 4096*h}")
            if tight or h == 0: g.append("s_nop 0")
            for i in range(4):
                g.append(f"buffer_load_dwordx4 v{self.VDB+4*h+i}, s[{SB}:{SB+3}], s{sOFFB} offen offset:{1024*i} lds")
        g.append(f"s_add_u32 s{sOFFB}, s{sOFFB}, 128")
        return g

    def dma_tile(self, stage, tight=False):
        b = self.dma_b(stage, tight)
        if not tight:
            b = [x for x in b if x != "s_nop 0"]
        return self.dma_a(stage, tight) + b

    def reads(self, stage, sub, p):
        hi = 1 if stage == 2 else 0
        so = self.STG if stage == 1 else 0
        r = []
        for f in range(8):
            r.append(f"ds_read_b128 v[{self.fb(p,f)}:{self.fb(p,f)+3}], v{self.VB+2*hi+sub} offset:{so + f*2048}")
            if f < 4:
                for u in range(2):
                    r.append(f"ds_read_b64_tr_b16 v[{self.fa(p,f)+2*u}:{self.fa(p,f)+2*u+1}], v{self.VA+2*hi+(f&1)} offset:{so + (f>>1)*4096 + sub*2048 + u*256}")
        return r

    def setup(self, a):
        a(f"v_lshlrev_b32 v{self.VDA}, 4, v1")
        a(f"s_lshl_b32 s{sT0}, s{sWAVE}, 6")
        a("v_lshrrev_b32 v5, 3, v1")
        a(f"v_add_u32 v5, s{sT0}, v5")
        a("v_lshlrev_b32 v5, 12, v5")
        a("v_and_b32 v6, 7, v1")
        for i in range(8):
            a(f"v_add_u32 v7, {4*(i&1)}, v2")
            a("v_xor_b32 v7, v7, v6")
            a("v_lshl_add_u32 v7, v7, 4, v5")
            a(f"v_add_u32 v{self.VDB+i}, {8*i*4096 - (i%4)*1024}, v7")
        a(f"s_lshl_b32 s{sSTEPA}, s{sWAVE}, 13")
        a("v_lshl_add_u32 v5, v2, 3, v3")
        a("v_lshlrev_b32 v5, 6, v5")
        a("v_and_b32 v6, 1, v4")
        a("v_lshl_add_u32 v5, v6, 3, v5")
        a(f"s_lshl_b32 s{sT0}, s{sWA}, 13")
        a(f"v_add_u32 v5, s{sT0}, v5")
        a("v_and_b32 v6, 1, v2")
        a("v_lshlrev_b32 v6, 1, v6")
        a("v_lshrrev_b32 v7, 1, v4")
        for u2 in range(2):
            a(f"v_add_u32 v17, {2*u2}, v7")
            a("v_xor_b32 v17, v17, v6")
            a(f"v_lshl_add_u32 v{self.VA+u2}, v17, 4, v5")
            a(f"v_add_u32 v{self.VA+2+u2}, {2*self.STG}, v{self.VA+u2}")
        a("v_and_b32 v6, 15, v1")
        a(f"s_lshl_b32 s{sT0}, s{sWB}, 14")
        a(f"s_add_u32 s{sT0}, s{sT0}, 16384")
        a("v_lshlrev_b32 v5, 7, v6")
        a(f"v_add_u32 v5, s{sT0}, v5")
        a("v_lshrrev_b32 v6, 1, v6")
        for sub in range(2):
            a(f"v_add_u32 v7, {4*sub}, v2")
            a("v_xor_b32 v7, v7, v6")
            a(f"v_lshl_add_u32 v{self.VB+sub}, v7, 4, v5")
            a(f"v_add_u32 v{self.VB+2+sub}, {2*self.STG}, v{self.VB+sub}")


def signal(a, flag_idx_sgpr, flag_base):
    a("s_waitcnt vmcnt(0)")
    a("s_barrier")
    skip = a.newlabel("sig")
    a(f"s_cmp_lg_u32 s{sWAVE}, 0")
    a(f"s_cbranch_scc1 {skip}")
    a(f"s_add_u32 s{sT0}, s{flag_idx_sgpr}, {flag_base}")
    a(f"s_lshl_b32 s{sT0}, s{sT0}, 8")
    a("s_mov_b64 exec, 1")
    a("v_mov_b32 v5, 0")
    a("v_mov_b32 v6, 1")
    a(f"buffer_atomic_add v6, v5, s[{SD}:{SD+3}], s{sT0} offen sc1")
    a("s_mov_b64 exec, -1")
    a.label(skip)


def wait_flag(a, flag_idx_sgpr, flag_base, count):
    skip = a.newlabel("wf")
    loop = a.newlabel("poll")
    a(f"s_cmp_lg_u32 s{sWAVE}, 0")
    a(f"s_cbranch_scc1 {skip}")
    a(f"s_add_u32 s{sT0}, s{flag_idx_sgpr}, {flag_base}")
    a(f"s_lshl_b32 s{sT0}, s{sT0}, 8")
    a("v_mov_b32 v5, 0")
    a.label(loop)
    a(f"buffer_load_dword v6, v5, s[{SD}:{SD+3}], s{sT0} offen sc1")
    a("s_waitcnt vmcnt(0)")
    a(f"v_readfirstlane_b32 s{sT2}, v6")
    a(f"s_cmp_ge_u32 s{sT2}, {count}")
    a(f"s_cbranch_scc1 {skip}")
    a("s_sleep 2")
    a(f"s_branch {loop}")
    a.label(skip)
    a("s_barrier")


def gen_gmlp(a, cfg, P1):
    SP = Spatial()
    Z = 64
    Z1 = 192
    ST = 40
    vST = 58
    BV = 28
    TAB = 147456
    sB = 35
    z2r = lambda f, fb: Z + (fb * 4 + f) * 4
    make_srd(a, SB, 46, 2048 * 2048 * 2)
    make_srd(a, SA, sWS, 7 * MB, add=WS_Z2)
    make_srd(a, SD, sWS, 32 * 1024, add=WS_FLAG)
    SP.setup(a)
    a(f"s_lshl_b32 s{sOFFB}, s{sRB}, 20")
    a(f"s_lshl_b32 s{sOFFA}, s{sJ}, 19")
    a(f"s_add_u32 s{sOFFA}, s{sOFFA}, s{sLW}")
    a("s_barrier")
    for t in range(3):
        for ins in SP.dma_b(t, tight=True):
            a(ins)
    make_srd(a, SC, 48, 4096)
    a("v_and_b32 v6, 15, v1")
    a("v_lshlrev_b32 v5, 1, v6")
    a(f"s_lshl_b32 s{sT0}, s{sRB}, 9")
    a(f"s_lshl_b32 s{sT1}, s{sWB}, 8")
    a(f"s_add_u32 s{sT0}, s{sT0}, s{sT1}")
    for fb in range(8):
        a(f"buffer_load_ushort v{BV+fb}, v5, s[{SC}:{SC+3}], s{sT0} offen offset:{32*fb}")
    c = -2.0 * math.sqrt(2.0 / math.pi) * math.log2(math.e)
    a(f"v_mov_b32 v59, {f2u(c):#x}")
    a(f"s_mov_b32 s53, {f2u(c * 0.044715):#x}")
    for fb in range(8):
        for f in range(4):
            for j in range(4):
                a(f"v_accvgpr_read_b32 v{z2r(f,fb)+j}, a{P1.accn(4+f, fb)+j}")
            emit_parallel(a, [gelu_ops(z2r(f, fb) + j, 60 + j) for j in range(4)])
            for j in range(4):
                x = z2r(f, fb) + j
                if f == 0 and j == 0:
                    a(f"v_mov_b32 v{ST+fb}, v{x}")
                    a(f"v_mul_f32 v{ST+8+fb}, v{x}, v{x}")
                else:
                    a(f"v_add_f32 v{ST+fb}, v{ST+fb}, v{x}")
                    a(f"v_fmac_f32 v{ST+8+fb}, v{x}, v{x}")
    a("s_nop 1")
    for m in range(4):
        b = ST + 4 * m
        a(f"v_permlane16_swap_b32 v{b}, v{b+1}")
        a(f"v_permlane16_swap_b32 v{b+2}, v{b+3}")
    a("s_nop 1")
    for m in range(4):
        b = ST + 4 * m
        a(f"v_add_f32 v{b}, v{b}, v{b+1}")
        a(f"v_add_f32 v{b+2}, v{b+2}, v{b+3}")
    a("s_nop 1")
    for m in range(4):
        b = ST + 4 * m
        a(f"v_permlane32_swap_b32 v{b}, v{b+2}")
    a("s_nop 1")
    a(f"v_add_f32 v60, v{ST}, v{ST+2}")
    a(f"v_add_f32 v61, v{ST+8}, v{ST+10}")
    a(f"v_add_f32 v62, v{ST+4}, v{ST+6}")
    a(f"v_add_f32 v63, v{ST+12}, v{ST+14}")
    a(f"s_lshl_b32 s{sT0}, s{sWA}, 11")
    a(f"s_lshl_b32 s{sT1}, s{sWB}, 10")
    a(f"s_add_u32 s{sT0}, s{sT0}, s{sT1}")
    a(f"s_add_u32 s{sT0}, s{sT0}, {TAB}")
    a("v_lshlrev_b32 v5, 3, v1")
    a(f"v_add_u32 v5, s{sT0}, v5")
    a("ds_write_b64 v5, v[60:61]")
    a("ds_write_b64 v5, v[62:63] offset:512")
    a("v_lshlrev_b32 v56, 3, v0")
    a(f"v_add_u32 v57, {TAB}, v56")
    a("s_waitcnt lgkmcnt(0)")
    a("s_barrier")
    a("ds_read_b64 v[60:61], v57")
    a("ds_read_b64 v[62:63], v57 offset:2048")
    make_srd(a, SC, sWS, 8 * 14 * 2048, add=WS_STAT)
    a(f"s_mul_i32 s{sB}, s{sRB}, {14*2048}")
    a(f"s_lshl_b32 s{sT0}, s{sJ}, 11")
    a(f"s_add_u32 s{sT0}, s{sT0}, s{sB}")
    a("s_waitcnt lgkmcnt(0)")
    a("v_add_f32 v60, v60, v62")
    a("v_add_f32 v61, v61, v63")
    a(f"buffer_store_dwordx2 v[60:61], v56, s[{SC}:{SC+3}], s{sT0} offen sc1")
    signal(a, sRB, 0)
    diag_mark(a, cfg, sDIAG + 12 + 4 * 2)
    for fb in range(8):
        for f in range(4):
            tb = 36 + 4 * ((fb * 4 + f) & 1)
            for j in range(4):
                a(f"v_accvgpr_read_b32 v{tb+j}, a{P1.accn(f, fb)+j}")
            emit_parallel(a, [gelu_ops(tb + j, 60 + j) for j in range(4)])
            z = Z1 + (fb * 4 + f) * 2
            a(f"v_cvt_pk_bf16_f32 v{z}, v{tb}, v{tb+1}")
            a(f"v_cvt_pk_bf16_f32 v{z+1}, v{tb+2}, v{tb+3}")
    for fb in range(8):
        a(f"v_lshlrev_b32 v{BV+fb}, 16, v{BV+fb}")
    wait_flag(a, sRB, 0, 14)
    gregs = [36 + 2 * jj for jj in range(10)] + [60, 62, 18, 6]
    for jj in range(14):
        a(f"s_add_u32 s{sT0}, s{sB}, {jj*2048}")
        d = gregs[jj]
        a(f"buffer_load_dwordx2 v[{d}:{d+1}], v56, s[{SC}:{SC+3}], s{sT0} offen sc1")
    regs = gregs
    a("s_waitcnt vmcnt(0)")
    for r in regs[1:]:
        a(f"v_add_f32 v36, v36, v{r}")
        a(f"v_add_f32 v37, v37, v{r+1}")
    a(f"v_mul_f32 v36, {f2u(1.0/1792):#x}, v36")
    a(f"v_mul_f32 v37, {f2u(1.0/1792):#x}, v37")
    a("v_fma_f32 v37, -v36, v36, v37")
    a("v_max_f32 v37, 0, v37")
    round_bf16(a, 36)
    round_bf16(a, 37)
    a("v_add_f32 v37, 0x3727c5ac, v37")
    round_bf16(a, 37)
    a("v_sqrt_f32 v37, v37")
    a("s_nop 0")
    round_bf16(a, 37)
    a("v_rcp_f32 v37, v37")
    a("s_nop 0")
    a("v_mul_f32 v36, v36, v37")
    a("v_sub_f32 v36, 0, v36")
    a("ds_write_b64 v57, v[36:37] offset:4096")
    a("v_and_b32 v6, 15, v1")
    a(f"s_lshl_b32 s{sT0}, s{sWB}, 10")
    a(f"s_add_u32 s{sT0}, s{sT0}, {TAB+4096}")
    a("v_lshlrev_b32 v5, 3, v6")
    a(f"v_add_u32 v5, s{sT0}, v5")
    a("s_waitcnt lgkmcnt(0)")
    a("s_barrier")
    for fb in range(8):
        a(f"ds_read_b64 v[{ST+2*fb}:{ST+2*fb+1}], v5 offset:{128*fb}")
    emit_sigma(a, 7, 2, 5)
    a(f"v_lshl_add_u32 v{vST}, v7, 4, v6")
    a(f"v_lshlrev_b32 v{vST}, 4, v{vST}")
    a("v_bfe_u32 v5, v1, 3, 1")
    a("v_lshlrev_b32 v5, 1, v5")
    a("v_xor_b32 v7, v7, v5")
    a("v_lshlrev_b32 v7, 4, v7")
    a("v_lshl_add_u32 v7, v6, 6, v7")
    a(f"s_lshl_b32 s{sB}, s{sJ}, 19")
    a(f"s_lshl_b32 s{sT0}, s{sRB}, 16")
    a(f"s_add_u32 s{sB}, s{sB}, s{sT0}")
    a(f"s_lshl_b32 s{sT0}, s{sWB}, 15")
    a(f"s_add_u32 s{sB}, s{sB}, s{sT0}")
    a(f"s_lshl_b32 s{sT0}, s{sWA}, 13")
    a(f"s_add_u32 s{sB}, s{sB}, s{sT0}")
    a("s_waitcnt lgkmcnt(0)")
    k = 0
    for fb in range(8):
        for pp in range(2):
            tb = 36 if (k & 1) == 0 else 60
            k += 1
            for f in (2 * pp, 2 * pp + 1):
                for j in range(4):
                    x = z2r(f, fb) + j
                    a(f"v_fma_f32 v{x}, v{x}, v{ST+2*fb+1}, v{ST+2*fb}")
            x0, x1 = z2r(2 * pp, fb), z2r(2 * pp + 1, fb)
            a(f"v_cvt_pk_bf16_f32 v{tb}, v{x0}, v{x0+1}")
            a(f"v_cvt_pk_bf16_f32 v{tb+1}, v{x0+2}, v{x0+3}")
            a(f"v_cvt_pk_bf16_f32 v{tb+2}, v{x1}, v{x1+1}")
            a(f"v_cvt_pk_bf16_f32 v{tb+3}, v{x1+2}, v{x1+3}")
            a(f"s_add_u32 s{sT0}, s{sB}, {(fb>>2)*16384 + pp*4096}")
            a(f"v_permlane16_swap_b32 v{tb}, v{tb+2}")
            a(f"v_permlane16_swap_b32 v{tb+1}, v{tb+3}")
            a(f"buffer_store_dwordx4 v[{tb}:{tb+3}], v7, s[{SA}:{SA+3}], s{sT0} offen offset:{(fb&3)*1024} sc1")
    signal(a, sJ, 8)
    diag_mark(a, cfg, sDIAG + 12 + 4 * 3)
    wait_flag(a, sJ, 8, 8)
    diag_mark(a, cfg, sDIAG + 12 + 4 * 4)
    for t in range(3):
        for ins in SP.dma_a(t, tight=True):
            a(ins)
    a("s_waitcnt vmcnt(8)")
    a("s_barrier")
    for r in SP.reads(0, 0, 0):
        a(r)
    SP.first_wait = 4
    SP.loop(a)
    diag_mark(a, cfg, sDIAG + 12 + 4 * 5)
    make_srd(a, SC, sWS, 7 * MB, add=WS_U)
    a(f"s_lshl_b32 s{sB}, s{sJ}, 2")
    a(f"s_lshl_b32 s{sT0}, s{sWA}, 1")
    a(f"s_add_u32 s{sB}, s{sB}, s{sT0}")
    a(f"s_lshl_b32 s{sB}, s{sB}, 7")
    a(f"s_lshl_b32 s{sT0}, s{sRB}, 4")
    a(f"s_add_u32 s{sB}, s{sB}, s{sT0}")
    a(f"s_lshl_b32 s{sT0}, s{sWB}, 3")
    a(f"s_add_u32 s{sB}, s{sB}, s{sT0}")
    a(f"s_lshl_b32 s{sB}, s{sB}, 10")
    a("s_nop 7")
    k = 0
    for fb in range(8):
        for pp in range(2):
            tb = 64 + 24 * (k & 1); k += 1
            for h in range(2):
                f = 2 * pp + h
                z = Z1 + (fb * 4 + f) * 2
                for j in range(4):
                    a(f"v_accvgpr_read_b32 v{tb+4*h+j}, a{SP.accn(f, fb)+j}")
                a(f"v_lshlrev_b32 v{tb+8+4*h}, 16, v{z}")
                a(f"v_and_b32 v{tb+8+4*h+1}, 0xffff0000, v{z}")
                a(f"v_lshlrev_b32 v{tb+8+4*h+2}, 16, v{z+1}")
                a(f"v_and_b32 v{tb+8+4*h+3}, 0xffff0000, v{z+1}")
            for j in range(8):
                a(f"v_add_f32 v{tb+j}, v{BV+fb}, v{tb+j}")
            for j in range(8):
                a(f"v_mul_f32 v{tb+j}, v{tb+j}, v{tb+8+j}")
            for j in range(4):
                a(f"v_cvt_pk_bf16_f32 v{tb+16+j}, v{tb+2*j}, v{tb+2*j+1}")
            a(f"s_add_u32 s{sT0}, s{sB}, {pp*131072 + (fb>>2)*4096}")
            a(f"v_permlane16_swap_b32 v{tb+16}, v{tb+18}")
            a(f"v_permlane16_swap_b32 v{tb+17}, v{tb+19}")
            a(f"buffer_store_dwordx4 v[{tb+16}:{tb+19}], v{vST}, s[{SC}:{SC+3}], s{sT0} offen offset:{(fb&3)*1024}")


def gen_k12(a, cfg):
    name = "mid_kernel"
    P1 = Phase1()
    kernel_header(a, name)
    a("s_cmp_lt_u32 s2, 240")
    a("s_cbranch_scc1 L_k12_start")
    a("s_endpgm")
    a.label("L_k12_start")
    a(f"s_load_dwordx2 s[40:41], s[0:1], {ARG['wq']}")
    a(f"s_load_dwordx4 s[44:47], s[0:1], {ARG['w_in']}")
    a(f"s_load_dwordx2 s[{sWS}:{sWS+1}], s[0:1], {ARG['ws']}")
    a(f"s_load_dwordx4 s[36:39], s[0:1], {ARG['k']}")
    a(f"s_load_dwordx2 s[48:49], s[0:1], {ARG['b_sp']}")
    diag_start(a, cfg, sDIAG)
    a("v_lshrrev_b32 v5, 6, v0")
    lane_fields(a)
    a(f"v_readfirstlane_b32 s{sWAVE}, v5")
    a("s_and_b32 s50, s2, 1")
    a("s_bfe_u32 s51, s2, 0x20001")
    a("s_lshr_b32 s52, s2, 3")
    a(f"s_and_b32 s{sWA}, s{sWAVE}, 1")
    a(f"s_lshr_b32 s{sWB}, s{sWAVE}, 1")
    a(f"s_lshl_b32 s{sLW}, s{sWAVE}, 12")
    a("s_cmp_ge_u32 s52, 16")
    a("s_cbranch_scc1 L_k12_gm")
    a(f"s_and_b32 s{sRB}, s52, 3")
    a(f"s_lshr_b32 s{sJ}, s52, 2")
    a("s_lshl_b32 s51, s51, 2")
    a(f"s_add_u32 s{sJ}, s{sJ}, s51")
    a(f"s_lshl_b32 s{sOFFA}, s{sJ}, 9")
    a("s_mov_b32 s53, 8192")
    a("s_mov_b32 s54, 128")
    a("s_mov_b32 s55, 256")
    a("s_waitcnt lgkmcnt(0)")
    make_srd(a, SA, 40, 1024 * 4096 * 2)
    a("s_branch L_k12_go")
    a.label("L_k12_gm")
    a("s_mul_i32 s51, s51, 14")
    a("s_add_u32 s51, s51, s52")
    a("s_sub_u32 s51, s51, 16")
    a(f"s_and_b32 s{sRB}, s51, 3")
    a(f"s_lshr_b32 s{sJ}, s51, 2")
    a(f"s_lshl_b32 s{sOFFA}, s{sJ}, 8")
    a("s_mov_b32 s53, 7168")
    a("s_mov_b32 s54, 3584")
    a("s_mov_b32 s55, 128")
    a("s_waitcnt lgkmcnt(0)")
    make_srd(a, SA, 44, 1024 * 3584 * 2)
    a.label("L_k12_go")
    a("s_lshl_b32 s50, s50, 2")
    a(f"s_add_u32 s{sRB}, s{sRB}, s50")
    a(f"s_lshl_b32 s{sSTEPA}, s53, 5")
    make_srd(a, SB, sWS, 4 * MB, add=WS_XN)
    a(f"s_lshl_b32 s{sOFFB}, s{sRB}, 14")
    a(f"s_add_u32 s{sOFFB}, s{sOFFB}, s{sLW}")
    P1.setup_dma(a, 53, 54, 55)
    P1.prologue_dma(a)
    P1.setup_reads(a)
    P1.first_reads(a)
    diag_mark(a, cfg, sDIAG + 12)
    P1.loop(a)
    diag_mark(a, cfg, sDIAG + 12 + 4)
    a("s_cmp_ge_u32 s52, 16")
    a("s_cbranch_scc1 L_k12_gm2")
    gen_attention(a, cfg, P1)
    a("s_branch L_k12_fin")
    a.label("L_k12_gm2")
    gen_gmlp(a, cfg, P1)
    a.label("L_k12_fin")
    diag_end(a, cfg, sDIAG, 1, sWS, sWAVE, nmarks=6)
    a.label("L_k12_end")
    a("s_endpgm")
    return (name, 240, 256, 160 * 1024, kernel_desc(name, 512, 102, 256))


class Final0(Gemm):
    KS, S, P2, FA, FB = 4, 3, 12, 2, 4
    STG = 49152
    loopreg = sLOOP
    VDA, VDB, VA, VB, FR = 8, 12, 16, 20, (32, 56)

    def __init__(self, name, NT, accbase):
        self.name, self.NT, self.accbase = name, NT, accbase

    def fa(self, p, f): return self.FR[p] + 4 * f
    def fb(self, p, f): return self.FR[p] + 8 + 4 * f
    def accn(self, x, y): return self.accbase + (x * 4 + y) * 4
    def acc(self, x, y): return f"a[{self.accn(x,y)}:{self.accn(x,y)+3}]"

    def dma_tile(self, stage, tight=False):
        g = [f"s_add_u32 m0, s{sLW}, {stage*self.STG}"]
        if tight: g.append("s_nop 0")
        for i in range(4):
            g.append(f"buffer_load_dwordx4 v{self.VDA+i}, s[{SA}:{SA+3}], s{sOFFA} offen offset:{1024*i} lds")
        g.append(f"s_add_u32 m0, s{sSTEPA}, {stage*self.STG+16384}")
        g.append(f"s_add_u32 s{sOFFA}, s{sOFFA}, {128*2048}")
        for i in range(4):
            g.append(f"buffer_load_dwordx4 v{self.VDB}, s[{SB}:{SB+3}], s{sOFFB} offen offset:{1024*i} lds")
        g.append(f"s_add_u32 m0, s{sSTEPA}, {stage*self.STG+16384+4096}")
        if tight: g.append("s_nop 0")
        for i in range(4):
            g.append(f"buffer_load_dwordx4 v{self.VDB+1}, s[{SB}:{SB+3}], s{sOFFB} offen offset:{1024*i} lds")
        g.append(f"s_add_u32 s{sOFFB}, s{sOFFB}, {4*131072}")
        return g

    def reads(self, stage, sub, p):
        hi = 1 if stage == 2 else 0
        so = self.STG if stage == 1 else 0
        r = []
        for f in range(4):
            r.append(f"ds_read_b128 v[{self.fb(p,f)}:{self.fb(p,f)+3}], v{self.VB+stage} offset:{sub*8192 + f*1024}")
            if f < 2:
                for u in range(2):
                    r.append(f"ds_read_b64_tr_b16 v[{self.fa(p,f)+2*u}:{self.fa(p,f)+2*u+1}], v{self.VA+2*hi+f} offset:{so + sub*4096 + u*512}")
        return r

    def setup(self, a):
        a(f"s_lshl_b32 s{sT0}, s{sWAVE}, 5")
        a("v_lshrrev_b32 v5, 3, v1")
        a(f"v_add_u32 v5, s{sT0}, v5")
        a("v_lshlrev_b32 v5, 11, v5")
        a("v_and_b32 v6, 7, v1")
        a("v_and_b32 v7, 1, v2")
        for i in range(4):
            a(f"v_add_u32 v14, {2*(i&1)}, v7")
            a("v_lshlrev_b32 v14, 1, v14")
            a("v_xor_b32 v14, v14, v6")
            a("v_lshl_add_u32 v14, v14, 4, v5")
            a(f"v_add_u32 v{self.VDA+i}, {8*i*2048 - i*1024}, v14")
        a(f"v_lshlrev_b32 v{self.VDB}, 4, v1")
        a(f"v_add_u32 v{self.VDB+1}, 4096, v{self.VDB}")
        a(f"s_lshl_b32 s{sSTEPA}, s{sWAVE}, 13")
        a("v_lshl_add_u32 v5, v2, 3, v3")
        a("v_lshlrev_b32 v5, 7, v5")
        a("v_and_b32 v6, 1, v4")
        a("v_lshl_add_u32 v5, v6, 3, v5")
        a("v_lshrrev_b32 v6, 1, v4")
        a("v_lshl_add_u32 v5, v6, 4, v5")
        a("v_and_b32 v6, 1, v2")
        a("v_lshlrev_b32 v6, 1, v6")
        a("v_lshrrev_b32 v7, 1, v3")
        a("v_or_b32 v6, v6, v7")
        a(f"s_lshl_b32 s{sT0}, s{sWA}, 1")
        for f in range(2):
            a(f"s_add_u32 s{sT1}, s{sT0}, {f}")
            a(f"v_xor_b32 v7, s{sT1}, v6")
            a(f"v_lshl_add_u32 v{self.VA+f}, v7, 5, v5")
            a(f"v_add_u32 v{self.VA+2+f}, {2*self.STG}, v{self.VA+f}")
        a(f"s_lshl_b32 s{sT0}, s{sWB}, 12")
        a(f"s_add_u32 s{sT0}, s{sT0}, 16384")
        a(f"v_lshlrev_b32 v{self.VB}, 4, v1")
        a(f"v_add_u32 v{self.VB}, s{sT0}, v{self.VB}")
        a(f"v_add_u32 v{self.VB+1}, {self.STG}, v{self.VB}")
        a(f"v_add_u32 v{self.VB+2}, {2*self.STG}, v{self.VB}")


def gen_k3(a, cfg):
    name = "fin_kernel"
    G1, G2 = Final0("f1", 32, 0), Final0("f2", 14, 32)
    kernel_header(a, name)
    a("s_cmp_lt_u32 s2, 256")
    a("s_cbranch_scc1 L_k3_start")
    a("s_endpgm")
    a.label("L_k3_start")
    a(f"s_load_dwordx2 s[40:41], s[0:1], {ARG['wo']}")
    a(f"s_load_dwordx4 s[44:47], s[0:1], {ARG['w_out']}")
    a(f"s_load_dwordx2 s[{sWS}:{sWS+1}], s[0:1], {ARG['ws']}")
    a(f"s_load_dwordx2 s[36:37], s[0:1], {ARG['x']}")
    diag_start(a, cfg, sDIAG)
    a("v_lshrrev_b32 v5, 6, v0")
    lane_fields(a)
    a(f"v_readfirstlane_b32 s{sWAVE}, v5")
    a("s_and_b32 s50, s2, 3")
    a("s_bfe_u32 s51, s2, 0x10002")
    a("s_lshr_b32 s52, s2, 3")
    a(f"s_and_b32 s{sRB}, s52, 3")
    a("s_lshl_b32 s50, s50, 2")
    a(f"s_add_u32 s{sRB}, s{sRB}, s50")
    a(f"s_lshr_b32 s{sJ}, s52, 2")
    a("s_lshl_b32 s51, s51, 3")
    a(f"s_add_u32 s{sJ}, s{sJ}, s51")
    a(f"s_and_b32 s{sWA}, s{sWAVE}, 1")
    a(f"s_lshr_b32 s{sWB}, s{sWAVE}, 1")
    a(f"s_lshl_b32 s{sLW}, s{sWAVE}, 12")
    a("s_waitcnt lgkmcnt(0)")
    make_srd(a, SA, 40, 4096 * 1024 * 2)
    make_srd(a, SB, sWS, 16 * MB, add=WS_O)
    a(f"s_lshl_b32 s{sOFFA}, s{sJ}, 7")
    a(f"s_lshl_b32 s53, s{sWAVE}, 17")
    a(f"s_lshl_b32 s{sT0}, s{sRB}, 13")
    a(f"s_add_u32 s53, s53, s{sT0}")
    a(f"s_mov_b32 s{sOFFB}, s53")
    G1.setup(a)
    G1.prologue_dma(a)
    G1.first_reads(a)
    diag_mark(a, cfg, sDIAG + 12)
    G1.loop(a)
    diag_mark(a, cfg, sDIAG + 12 + 4)
    make_srd(a, SA, 44, 1792 * 1024 * 2)
    make_srd(a, SB, sWS, 7 * MB, add=WS_U)
    a(f"s_lshl_b32 s{sOFFA}, s{sJ}, 7")
    a(f"s_mov_b32 s{sOFFB}, s53")
    a("s_barrier")
    G2.prologue_dma(a)
    make_srd(a, SC, 36, 4 * MB)
    make_srd(a, SD, 46, 4 * MB)
    emit_sigma(a, 7, 2, 5)
    a("v_and_b32 v6, 15, v1")
    a("v_lshlrev_b32 v24, 11, v6")
    a("v_lshl_add_u32 v24, v7, 4, v24")
    a(f"s_lshl_b32 s54, s{sRB}, 18")
    a(f"s_lshl_b32 s{sT0}, s{sWB}, 17")
    a(f"s_add_u32 s54, s54, s{sT0}")
    a(f"s_lshl_b32 s{sT0}, s{sJ}, 7")
    a(f"s_add_u32 s54, s54, s{sT0}")
    a(f"s_lshl_b32 s{sT0}, s{sWA}, 6")
    a(f"s_add_u32 s54, s54, s{sT0}")
    XR = 80
    for fb in range(4):
        a(f"s_add_u32 s{sT0}, s54, {fb*32768}")
        a(f"buffer_load_dwordx4 v[{XR+4*fb}:{XR+4*fb+3}], v24, s[{SC}:{SC+3}], s{sT0} offen")
    G2.first_reads(a, outstanding_after=4)
    G2.first_wait = 12 + 4
    G2.loop(a)
    diag_mark(a, cfg, sDIAG + 12 + 8)
    a(f"s_mov_b32 s53, {f2u(-math.log2(math.e)):#x}")
    a("s_nop 7")
    a("s_waitcnt vmcnt(0)")
    for fb in range(4):
        tb = 96 + 32 * (fb & 1)
        for h in range(2):
            for j in range(4):
                a(f"v_accvgpr_read_b32 v{tb+4*h+j}, a{G2.accn(h, fb)+j}")
                a(f"v_accvgpr_read_b32 v{tb+8+4*h+j}, a{G1.accn(h, fb)+j}")
        emit_parallel(a, [[f"v_mul_f32 v{tb+16+j}, s53, v{tb+j}", f"v_exp_f32 v{tb+16+j}, v{tb+16+j}", f"v_add_f32 v{tb+16+j}, 1.0, v{tb+16+j}",
                           f"v_rcp_f32 v{tb+16+j}, v{tb+16+j}", f"v_mul_f32 v{tb+j}, v{tb+j}, v{tb+8+j}", f"v_mul_f32 v{tb+j}, v{tb+j}, v{tb+16+j}"] for j in range(8)])
        for j in range(4):
            a(f"v_cvt_pk_bf16_f32 v{tb+24+j}, v{tb+2*j}, v{tb+2*j+1}")
        a(f"s_add_u32 s{sT0}, s54, {fb*32768}")
        a(f"v_permlane16_swap_b32 v{tb+24}, v{tb+26}")
        a(f"v_permlane16_swap_b32 v{tb+25}, v{tb+27}")
        for j in range(4):
            a(f"v_lshlrev_b32 v{tb+2*j}, 16, v{tb+24+j}")
            a(f"v_and_b32 v{tb+2*j+1}, 0xffff0000, v{tb+24+j}")
            a(f"v_lshlrev_b32 v{tb+8+2*j}, 16, v{XR+4*fb+j}")
            a(f"v_and_b32 v{tb+8+2*j+1}, 0xffff0000, v{XR+4*fb+j}")
        for j in range(8):
            a(f"v_add_f32 v{tb+j}, v{tb+j}, v{tb+8+j}")
        for j in range(4):
            a(f"v_cvt_pk_bf16_f32 v{tb+28+j}, v{tb+2*j}, v{tb+2*j+1}")
        a(f"buffer_store_dwordx4 v[{tb+28}:{tb+31}], v24, s[{SD}:{SD+3}], s{sT0} offen")
    diag_end(a, cfg, sDIAG, 2, sWS, sWAVE, nmarks=3)
    a("s_endpgm")
    return (name, 256, 256, 3 * 49152, kernel_desc(name, 160 + 64, 102, 160))


def build(cfg, kernels):
    a = Asm()
    infos = []
    for k in kernels:
        infos.append(k(a, cfg))
    hdr = "; recurrent_scan/sliding_block_cached/mixer_gmlp: generated by a Python generator script (hand-designed schedule)\n"
    for (name, grid, block, lds, desc) in infos:
        hdr += f"; @launch kernel={name} grid=({grid},1,1) block=({block},1,1) lds={lds}\n"
    hdr += '.amdgcn_target "amdgcn-amd-amdhsa--gfx950"\n'
    txt = a.text().replace("    ", " ")
    return hdr + txt + "".join(i[4] for i in infos)


def gen_empty(a, cfg):
    name = "nop_kernel"
    kernel_header(a, name)
    a("s_endpgm")
    return (name, 256, 256, 0, kernel_desc(name, 8, 16, 8))


if __name__ == "__main__":
    cfg = json.loads(sys.argv[2]) if len(sys.argv) > 2 else {}
    txt = build(cfg, [gen_k0, gen_k12, gen_k3] + ([gen_empty] if cfg.get("empty") else []))
    if cfg.get("empty"):
        ln = "; @launch kernel=nop_kernel grid=(256,1,1) block=(256,1,1) lds=0\n"
        if cfg.get("empty_first"):
            txt = txt.replace(ln, "").replace("; @launch kernel=ln_kernel", ln * cfg["empty"] + "; @launch kernel=ln_kernel")
        else:
            txt = txt.replace(ln, ln * cfg["empty"])
    open(sys.argv[1], "w").write(txt)
```
